```python
import torch

def _softmax(x, axis=-1):
    return torch.softmax(x, dim=axis)
def _gelu(x):
    return torch.nn.functional.gelu(x, approximate="tanh")
def _silu(x):
    return torch.nn.functional.silu(x)
def _sigmoid(x):
    return torch.sigmoid(x)
def _layernorm(x, axis=-1, eps=1e-5):
    m = x.mean(dim=axis, keepdim=True)
    v = x.var(dim=axis, keepdim=True, unbiased=False)
    return (x - m) / torch.sqrt(v + eps)
def _scatter_add(tgt, idx, src, axis=0):
    return tgt.clone().index_add_(axis, idx, src)
def _segment_sum(src, seg, n):
    out = torch.zeros((n,) + src.shape[1:], dtype=src.dtype)
    return out.index_add_(0, seg, src)
def _pad(x, pw):
    flat = tuple(v for pair in reversed(pw) for v in pair)
    return torch.nn.functional.pad(x, flat)

kernel_name = 'interleave_layers__linear_attn_block__sliding_block__prompt'

def setup_inputs():

    _w = (lambda a: (lambda t: t.to(torch.bfloat16) if t.is_floating_point() else t)(torch.as_tensor(a)))
    def _A_setup():
        B, S, D = 1, 2048, 512
        return {
            "x": _w((lambda *s: torch.randn(*s, dtype=torch.bfloat16) * 0.05)(B, S, D)),
            "wqkv": _w((lambda *s: torch.randn(*s, dtype=torch.bfloat16) * 0.05)(D, 3 * D)),
            "wo": _w((lambda *s: torch.randn(*s, dtype=torch.bfloat16) * 0.05)(D, D)),
        }
    _A_in = _A_setup()

    def _B_setup():
        B, S, D = 1, 2048, 512
        return {
            "x": _w((lambda *s: torch.randn(*s, dtype=torch.bfloat16) * 0.05)(B, S, D)),
            "wqkv": _w((lambda *s: torch.randn(*s, dtype=torch.bfloat16) * 0.1)(D, 3 * D)),
            "wo": _w((lambda *s: torch.randn(*s, dtype=torch.bfloat16) * 0.05)(D, D)),
        }
    _B_in = _B_setup()

    return {
        "A_x": _A_in["x"],
        "A_wqkv": _A_in["wqkv"],
        "A_wo": _A_in["wo"],
        "B_x": _B_in["x"],
        "B_wqkv": _B_in["wqkv"],
        "B_wo": _B_in["wo"],
    }

def reference(A_x, A_wqkv, A_wo, B_x, B_wqkv, B_wo):
    def _A_ref(x, wqkv, wo):
        B, S, D = x.shape
        H = 32; Dh = D // H
        qkv = (lambda x, *d: x.permute(*d))((x @ wqkv).reshape(B, S, 3, H, Dh), 2, 0, 3, 1, 4)
        q, k, v = qkv[0], qkv[1], qkv[2]
        phi = lambda t: torch.where(t > 0, t + 1, torch.exp(t)) + 1e-6
        pq, pk = phi(q), phi(k)
        kv = torch.einsum("bhsd,bhse->bhde", pk, v)
        z = torch.einsum("bhsd->bhd", pk)
        num = torch.einsum("bhqd,bhde->bhqe", pq, kv)
        den = torch.einsum("bhqd,bhd->bhq", pq, z)[..., None] + 1e-6
        o = num / den
        return (lambda x, *d: x.permute(*d))(o, 0, 2, 1, 3).reshape(B, S, D) @ wo

    def _B_ref(x, wqkv, wo):
        B, S, D = x.shape
        H = 32; Dh = D // H; W = 256
        qkv = (lambda x, *d: x.permute(*d))((x @ wqkv).reshape(B, S, 3, H, Dh), 2, 0, 3, 1, 4)
        q, k, v = qkv[0], qkv[1], qkv[2]
        scores = torch.einsum("bhqd,bhkd->bhqk", q, k) * (Dh ** -0.5)
        idx = torch.arange(S)
        mask = (idx[:, None] - idx[None, :] >= 0) & (idx[:, None] - idx[None, :] < W)
        scores = torch.where(mask[None, None], scores, -1e9)
        p = _softmax(scores, axis=-1)
        o = torch.einsum("bhqk,bhkd->bhqd", p, v)
        return (lambda x, *d: x.permute(*d))(o, 0, 2, 1, 3).reshape(B, S, D) @ wo

    x = A_x
    x = x + _A_ref(_layernorm(x, axis=-1), A_wqkv, A_wo)
    x = x + _B_ref(_layernorm(x, axis=-1), B_wqkv, B_wo)
    x = x + _A_ref(_layernorm(x, axis=-1), A_wqkv, A_wo)
    x = x + _B_ref(_layernorm(x, axis=-1), B_wqkv, B_wo)
    return x
```

```python
import re

REG = re.compile(r'^(-?)(abs\()?([vas])(?:(\d+)|\[(\d+):(\d+)\])\)?$')
TRANS = ('v_exp_', 'v_log_', 'v_rcp_', 'v_rsq_', 'v_sqrt_', 'v_sin_', 'v_cos_')

def regs_of(op):
    op = op.strip()
    if op == 'vcc': return {('s', 'vcc')}
    if op in ('vcc_lo', 'vcc_hi'): return {('s', 'vcc')}
    if op in ('exec', 'exec_lo', 'exec_hi'): return {('s', 'exec')}
    if op == 'm0': return {('s', 'm0')}
    m = REG.match(op)
    if not m: return set()
    k = m.group(3)
    if m.group(4) is not None: return {(k, int(m.group(4)))}
    return {(k, i) for i in range(int(m.group(5)), int(m.group(6)) + 1)}

class Ins:
    def __init__(self, text):
        self.text = text
        t = text.split(';')[0].strip()
        self.label = None; self.dir = False
        self.kind = 'other'; self.wr = set(); self.rd = set()
        self.A = self.B = self.C = set(); self.target = None; self.states = 1
        self.mn = ''
        if not t: self.kind = 'blank'; self.states = 0; return
        if t.endswith(':'): self.kind = 'label'; self.label = t[:-1]; self.states = 0; return
        if t.startswith('.'): self.kind = 'dir'; self.states = 0; return
        parts = t.split(None, 1)
        mn = self.mn = parts[0]
        rest = parts[1] if len(parts) > 1 else ''
        ops = [o.strip() for o in re.split(r',(?![^\[\(]*[\]\)])', rest)] if rest else []
        mods = ''
        if ops:
            last = ops[-1].split(None, 1)
            ops[-1] = last[0]
            mods = last[1] if len(last) > 1 else ''
        self.ops = ops; self.mods = mods
        R = [regs_of(o) for o in ops]
        U = lambda l: set().union(*l) if l else set()
        if mn == 's_nop': self.kind = 'nop'; self.states = int(ops[0], 0) + 1
        elif mn.startswith('v_mfma'):
            self.kind = 'mfma'; self.wr = R[0]; self.A, self.B, self.C = R[1], R[2], R[3]; self.rd = U(R[1:4])
            self.passes = 8 if '32x32' in mn else 4
        elif mn.startswith('v_'):
            self.kind = 'valu'
            self.trans = mn.startswith(TRANS)
            self.dot = mn.startswith('v_dot')
            if mn.startswith('v_permlane') :
                self.wr = R[0] | R[1]; self.rd = R[0] | R[1]
            elif re.match(r'v_(add|sub|subrev|addc|subb|subbrev)_co_', mn):
                self.wr = R[0] | R[1]; self.rd = U(R[2:])
            else:
                self.wr = R[0]; self.rd = U(R[1:])
                if mn.startswith(('v_fmac', 'v_dot2c', 'v_writelane', 'v_pk_fmac')): self.rd = self.rd | R[0]
                if mn.startswith('v_cmpx'): self.wr = self.wr | {('s', 'exec')}
            self.dpp = ('quad_perm' in mods or 'row_' in mods or 'dpp' in mn)
        elif mn.startswith('ds_'):
            self.kind = 'ds'
            if mn.startswith(('ds_read', 'ds_bpermute', 'ds_permute', 'ds_swizzle')): self.wr = R[0]; self.rd = U(R[1:])
            else: self.rd = U(R)
        elif mn.startswith(('buffer_', 'global_')):
            self.kind = 'vmem'
            self.lds = bool(re.search(r'\blds\b', mods))
            if '_load' in mn and not self.lds: self.wr = R[0]; self.rd = U(R[1:])
            else: self.rd = U(R)
            self.wide = None
            if '_store_dwordx3' in mn or '_store_dwordx4' in mn:
                self.wide = R[0] if mn.startswith('buffer_') else R[1]
        elif mn.startswith('s_'):
            self.kind = 'salu'
            if mn.startswith(('s_cbranch', 's_branch')): self.kind = 'branch'; self.target = ops[0]
            elif mn.startswith(('s_cmp', 's_bitcmp', 's_waitcnt', 's_barrier', 's_sleep', 's_setprio', 's_endpgm', 's_setpc')): self.rd = U(R)
            else: self.wr = R[0] if R else set(); self.rd = U(R[1:])

def need(p, c):
    n = 0
    vw = {r for r in p.wr if r[0] in 'va'}
    sw = {r for r in p.wr if r[0] == 's'}
    if p.kind == 'valu':
        if c.kind == 'mfma' and vw & c.rd: n = max(n, 3 if p.dot else 2)
        if c.kind == 'valu':
            if p.trans and not c.trans and vw & c.rd: n = max(n, 1)
            if p.trans and c.trans and vw & c.rd: n = max(n, 1)
            if c.mn.startswith('v_permlane') and vw & c.rd: n = max(n, 2)
            if c.mn.startswith(('v_readlane', 'v_readfirstlane')) and vw & c.rd: n = max(n, 1)
            if c.dpp and vw & c.rd: n = max(n, 2)
            if sw & c.rd:
                n = max(n, 4 if c.mn.startswith(('v_readlane', 'v_writelane')) else 2)
            if ('s', 'exec') in sw: n = max(n, 5)
            if p.dot and vw & (c.rd | c.wr) and not (c.mn == p.mn and not (vw & (regs_of(c.ops[1]) | regs_of(c.ops[2])))): n = max(n, 3)
        if c.kind in ('vmem', 'ds') and p.dot and vw & c.rd: n = max(n, 3)
        if c.kind in ('vmem', 'ds') and p.trans and vw & c.rd: n = max(n, 1)
        if c.kind == 'vmem' and sw & c.rd: n = max(n, 5)
        if c.kind == 'mfma' and ('s', 'exec') in sw: n = max(n, 4)
        if c.kind in ('salu', 'branch') and sw & c.rd: n = max(n, 1)
    if p.kind == 'mfma':
        big = p.passes == 8
        if c.kind == 'mfma':
            if p.wr & (c.A | c.B): n = max(n, 12 if big else 8)
            if p.wr & c.C and not (p.wr == c.C and p.passes == c.passes): n = max(n, 10 if big else 6)
            if p.wr & c.wr and not (p.wr == c.C and p.passes == c.passes): n = max(n, 10 if big else 6)
        elif c.kind in ('valu', 'vmem', 'ds'):
            if p.wr & (c.rd | c.wr): n = max(n, 12 if big else 8)
            if c.kind == 'valu' and p.C & c.wr: n = max(n, 7 if big else 3)
            if c.kind in ('vmem', 'ds') and p.C & c.wr: n = max(n, 7 if big else 3)
    if p.kind == 'vmem' and getattr(p, 'wide', None):
        if p.wide & c.wr: n = max(n, 2)
    if p.kind == 'salu' and ('s', 'm0') in p.wr:
        if c.kind == 'vmem' and c.lds: n = max(n, 1)
        if c.kind == 'valu' and ('s', 'm0') in c.rd: n = max(n, 1)
    return n

WIN = 14
def fix_hazards(lines):
    ins = [Ins(l) for l in lines]
    changed = True
    nins = 0
    while changed:
        changed = False
        labels = {x.label: i for i, x in enumerate(ins) if x.kind == 'label'}
        preds = {}
        for i, x in enumerate(ins):
            if x.kind == 'branch' and x.target in labels: preds.setdefault(labels[x.target], []).append(i)
        i = 0
        while i < len(ins):
            c = ins[i]
            if c.states == 0 or c.kind == 'nop': i += 1; continue
            worst = 0
            stack = [(i - 1, 0)]
            seen = set()
            while stack:
                k, d = stack.pop()
                while k >= 0 and d < WIN:
                    if (k, d) in seen: break
                    seen.add((k, d))
                    p = ins[k]
                    if p.kind == 'label':
                        for b in preds.get(k, []): stack.append((b, d))
                        kk = k - 1
                        while kk >= 0 and ins[kk].states == 0 and ins[kk].kind != 'label': kk -= 1
                        if kk >= 0 and ins[kk].mn in ('s_branch', 's_endpgm', 's_setpc_b64'): break
                        k -= 1; continue
                    if p.states:
                        r = need(p, c) - d
                        if r > worst: worst = r
                        d += p.states
                    k -= 1
            if worst > 0:
                ins.insert(i, Ins(f's_nop {worst-1}'))
                nins += 1
                changed = True
                break_out = True
                labels = {x.label: ii for ii, x in enumerate(ins) if x.kind == 'label'}
                preds = {}
                for ii, x in enumerate(ins):
                    if x.kind == 'branch' and x.target in labels: preds.setdefault(labels[x.target], []).append(ii)
                i += 1
            i += 1
    return [x.text for x in ins], nins

class Asm:
    def __init__(self):
        self.L = []
        self.vmops = []; self.lgops = []
        self.vm_done = 0; self.lg_done = 0
        self.uid = 0
        self.stack = [0]; self.saved = []; self.nreg = 0
        self.tail = []
    def __call__(self, s):
        for line in s.split('\n'):
            line = line.strip()
            if not line: continue
            self.L.append(line)
            mn = line.split()[0]
            if mn.startswith(('buffer_', 'global_')): self.vmops.append(self.stack[-1])
            elif mn.startswith('ds_'): self.lgops.append(self.stack[-1])
        return (len(self.vmops), len(self.lgops))
    def tok(self): return (len(self.vmops), len(self.lgops))
    def lab(self, base):
        self.uid += 1
        return f'L_{base}_{self.uid}'
    def cond_begin(self):
        self.nreg += 1; self.stack.append(self.nreg); self.saved.append((self.vm_done, self.lg_done))
    def cond_end(self):
        self.stack.pop(); self.vm_done, self.lg_done = self.saved.pop()
    def _cnt(self, ops, t):
        return sum(1 for r in ops[t:] if r in self.stack)
    def wait(self, vm=None, lg=None):
        parts = []
        if vm is not None:
            t = len(self.vmops) if vm == 'all' else vm[0]
            if vm == 'all' or t > self.vm_done:
                n = self._cnt(self.vmops, t)
                parts.append(f'vmcnt({min(n, 63)})')
                self.vm_done = max(self.vm_done, t)
        if lg is not None:
            t = len(self.lgops) if lg == 'all' else lg[1]
            if lg == 'all' or t > self.lg_done:
                n = self._cnt(self.lgops, t)
                parts.append(f'lgkmcnt({min(n, 15)})')
                self.lg_done = max(self.lg_done, t)
        if parts: self.L.append('s_waitcnt ' + ' '.join(parts))
    def text(self):
        out, n = fix_hazards(self.L)
        self.nops = n
        return '\n'.join(('' if (l.endswith(':') or l.startswith(('.', ';'))) else '    ') + l for l in out) + '\n'
```

```python
import sys, struct
from asmlib import Asm

KN = 'interleave_layers__linear_attn_block__sliding_block__prompt_kernel'

EPOCH = 0
IDF   = 0x1000
XF    = 0x2000
OF    = 0x4000
KVF   = 0x10000; KVF_L = 0x20000
STAT  = 0x80000
PART  = 0x100000; PART_L = 0xC0000
XB    = 0x400000
OB    = 0x600000
KVB   = 0x800000; KVB_L = 0x500000
REC   = 4352
SLOW  = 0x2000000
STAMP = 0xF000000
WS_BYTES = 0x10000000
WK, WV, WQ, WO, MISC = 0, 32768, 65536, 98304, 131072
QL  = MISC + 4 * REC
CST = QL + 8192
RSB = CST + 6144
TOT = MISC + 12288
ZOF = TOT + 2048
LDS_BYTES = 163840
S_X0, S_WA, S_WB, S_OA, S_OB, S_WS, S_OUT = [f's[{4*i+4}:{4*i+7}]' for i in range(7)]
sW, sC, sJ, sTB, sNON, sMODE, sXO, sOO, sST, sXF, sOF, sROT, sSLOW, sXCC = [f's{64+i}' for i in range(14)]
T = [f's{80+i}' for i in range(16)]
sHALF = 's[96:97]'; sSPIN = 's98'; sSTI = 's99'
SPIN_LIMIT = 400000
vLANE, vL16, vTR0, vTR1, vBK0, vBK1, vL4, vDBG, vRSTD, vRSW, vRSR, vMISC = [f'v{i}' for i in range(12)]
MU = 20; QF = 24; WF = 32; RES = 64; AK = 80; AV = 96; AQ = 112; XR = 128

def vr(a, n=1): return f'v{a}' if n == 1 else f'v[{a}:{a+n-1}]'
def ar(a, n=1): return f'a{a}' if n == 1 else f'a[{a}:{a+n-1}]'
def f2u(x): return struct.unpack('<I', struct.pack('<f', x))[0]
def hx(x): return f'0x{x & 0xffffffff:x}'
LOG2E = 1.4426950408889634; LN2 = 0.6931471805599453
ONES = 0x3f803f80

class Gen:
    def __init__(self, nlayers=4, debug=False, force_slow=False, force_fb=False):
        self.A = Asm(); self.nl = nlayers; self.debug = debug
        self.force_slow = force_slow; self.force_fb = force_fb
        self.names = []

    def stamp(self, name):
        if not self.debug: return
        A = self.A
        self.names.append(name)
        A('s_memrealtime s[100:101]'); A.wait(lg='all')
        A(f'v_writelane_b32 {vDBG}, s100, {len(self.names)-1}')

    def mfma(self, d, a, b, c):
        c = '0' if c is None else vr(c, 16)
        self.A(f'v_mfma_f32_32x32x16_bf16 {vr(d,16)}, {vr(a,4)}, {vr(b,4)}, {c}')

    def tr(self, dst, addr, off):
        self.A(f'ds_read_b64_tr_b16 {vr(dst,2)}, {addr} offset:{off}')
        return self.A(f'ds_read_b64_tr_b16 {vr(dst+2,2)}, {addr} offset:{off+256}')

    def pop(self, Q, n):
        for _ in range(n):
            if not Q: return
            x = Q.pop(0)
            if callable(x): x()
            else: self.A(x)

    def moded(self, lines):
        A = self.A
        ls, lb = A.lab('slow'), A.lab('back')
        A(f's_cmp_lg_u32 {sMODE}, 0'); A(f's_cbranch_scc1 {ls}')
        for l in lines: t = A(l)
        A(f'{lb}:')
        A.tail += [f'{ls}:'] + [l + ' sc1' if l.startswith('buffer_') else l for l in lines] + [f's_branch {lb}']
        return t

    def poll(self, soff, mask, exp, vtmp=12, first=None, imm=0, vaddr=vL4, valid=None):
        A = self.A
        l = A.lab('poll'); l2 = A.lab('pollc')
        A(f's_mov_b64 exec, {mask}')
        if first is not None:
            lo, lb = A.lab('pollo'), A.lab('pollb')
            A.wait(vm=first)
            A(f'v_cmp_ne_u32 vcc, {exp}, v{vtmp}')
            if valid: A(f's_and_b64 vcc, vcc, {valid}')
            A(f's_cbranch_vccnz {lo}')
            A(f'{lb}:')
            t = [f'{lo}:', f'buffer_load_dword v{vtmp}, {vaddr}, {S_WS}, {soff} offen offset:{imm} sc1',
                 f's_add_u32 {sSPIN}, {sSPIN}, 1', f's_cmp_lt_u32 {sSPIN}, {SPIN_LIMIT}',
                 f's_cselect_b64 s[94:95], {valid if valid else -1}, 0', 's_waitcnt vmcnt(0)',
                 f'v_cmp_ne_u32 vcc, {exp}, v{vtmp}', 's_and_b64 vcc, vcc, s[94:95]', f's_cbranch_scc1 {lo}', f's_branch {lb}']
            A.tail += t
        else:
            A(f'{l}:')
            A(f'buffer_load_dword v{vtmp}, {vaddr}, {S_WS}, {soff} offen offset:{imm} sc1')
            A(f's_add_u32 {sSPIN}, {sSPIN}, 1'); A(f's_cmp_lt_u32 {sSPIN}, {SPIN_LIMIT}')
            A(f's_cselect_b64 s[94:95], {valid if valid else -1}, 0')
            A.wait(vm='all')
            A(f'v_cmp_ne_u32 vcc, {exp}, v{vtmp}')
            A('s_and_b64 vcc, vcc, s[94:95]')
            A(f's_cbranch_scc1 {l}')
        A('s_mov_b64 exec, -1')

    def bk_addr(self, region): return (vBK0, region) if region < 65536 else (vBK1, region - 65536)
    def bk_write(self, region, abase):
        v, o = self.bk_addr(region)
        return [f'ds_write_b128 {v}, {ar(abase+4*i,4)} offset:{o+1024*i}' for i in range(8)]
    def bk_save(self, region, abase):
        v, o = self.bk_addr(region)
        return [f'ds_read_b128 {ar(abase+4*i,4)}, {v} offset:{o+1024*i}' for i in range(8)]
    def bk_load(self, srd, voff, rowbytes, colbyte, abase, st):
        out = [f's_mul_i32 {st}, {sW}, {128*rowbytes}\ns_lshl_b32 s93, {sJ}, 6\ns_add_u32 {st}, {st}, s93']
        for i in range(8):
            out.append(f'buffer_load_dwordx4 {ar(abase+4*i,4)}, {voff}, {srd}, {st} offen offset:{colbyte}' + (f'\ns_add_u32 {st}, {st}, {16*rowbytes}' if i < 7 else ''))
        return out

    def stats_finish(self, t, isA):
        u = t + 1
        Q = [f'v_mov_b32 v{u}, v{t}',
             f'v_permlane32_swap_b32 v{t}, v{u}',
             f'v_mul_f32 v{t}, {hx(f2u(-1.0/512))}, v{t}',
             f'v_mul_f32 v{u}, {hx(f2u(1.0/512))}, v{u}',
             f'v_fma_f32 v{u}, -v{t}, v{t}, v{u}',
             f'v_max_f32 v{u}, 0, v{u}',
             f'v_add_f32 v{u}, {hx(f2u(1e-5))}, v{u}',
             f'v_rsq_f32 {vRSTD}, v{u}',
             f'v_cvt_pk_bf16_f32 v{u}, v{t}, v{t}']
        if isA: Q += [f'v_mul_f32 {vRSTD}, {hx(f2u(LOG2E))}, {vRSTD}']
        Q += [f'v_lshlrev_b32 v{u}, 16, v{u}',
              f'ds_write_b32 {vRSW}, {vRSTD}',
              f'v_sub_f32 v{u}, v{t}, v{u}',
              f'v_cvt_pk_bf16_f32 v{MU}, v{t}, v{u}',
              f'v_cvt_pk_bf16_f32 v{MU+1}, v{t}, v{u}',
              f'v_cvt_pk_bf16_f32 v{MU+2}, v{t}, v{u}',
              f'v_cvt_pk_bf16_f32 v{MU+3}, v{t}, v{u}']
        Q += [f'ds_read_b128 {vr(AQ+4*i,4)}, {vRSR} offset:{32*i}' for i in range(4)]
        return Q

    def cs_write(self, src, t, addr, off):
        return [f'v_cvt_pk_bf16_f32 v{t}, v{src}, v{src}',
                f'v_lshlrev_b32 v{t+1}, 16, v{t}',
                f'v_sub_f32 v{t+1}, v{src}, v{t+1}',
                f'v_cvt_pk_bf16_f32 v{t+1}, v{t+1}, v{t+1}',
                f'ds_write_b64 {addr}, {vr(t,2)} offset:{off}']
    def cs_addr(self, dst):
        return ['\n'.join([f's_lshr_b32 s92, {sW}, 1', f's_lshl_b32 s92, s92, 9', f's_and_b32 s93, {sW}, 1', f's_lshl_b32 s93, s93, 3',
                f's_add_u32 s92, s92, s93', f's_add_u32 s92, s92, {CST}',
                f'v_and_b32 v{dst}, 31, {vLANE}', f'v_lshl_add_u32 v{dst}, v{dst}, 4, s92'])]

    def prologue(self):
        A = self.A
        A('s_cmp_ge_u32 s2, 256'); A('s_cbranch_scc1 L_end')
        A('s_load_dwordx16 s[80:95], s[0:1], 0')
        A('s_load_dwordx2 s[78:79], s[0:1], 64')
        A('v_lshrrev_b32 v12, 6, v0'); A('v_and_b32 v0, 63, v0')
        A(f'v_readfirstlane_b32 {sW}, v12')
        A(f's_and_b32 {sC}, s2, 7'); A(f's_lshr_b32 s3, s2, 3'); A(f's_lshr_b32 {sROT}, s3, 4')
        A(f's_lshl_b32 {sC}, {sC}, 1'); A(f's_add_u32 {sC}, {sC}, {sROT}'); A(f's_and_b32 {sJ}, s3, 15')
        A(f's_lshl_b32 {sTB}, {sC}, 2'); A(f's_add_u32 {sTB}, {sTB}, {sW}')
        A(f's_lshl_b32 {sROT}, {sROT}, 1'); A(f's_and_b32 {sXCC}, {sJ}, 1'); A(f's_add_u32 {sROT}, {sROT}, {sXCC}')
        A(f's_mov_b32 {sSPIN}, 0')
        if self.debug: A(f'v_mov_b32 {vDBG}, 0')
        vWQ, vWOf = 'v18', 'v19'
        XA = AQ + 8
        XRD = AQ
        A(f'v_lshlrev_b32 {vL16}, 4, {vLANE}')
        A(f'v_lshrrev_b32 v12, 2, {vLANE}'); A(f'v_and_b32 v13, 3, {vLANE}'); A('v_lshlrev_b32 v13, 4, v13')
        A(f'v_mul_u32_u24 {vWQ}, 3072, v12'); A(f'v_add_u32 {vWQ}, {vWQ}, v13')
        A(f'v_lshl_add_u32 {vWOf}, v12, 10, v13')
        A(f'v_lshrrev_b32 v12, 4, {vLANE}'); A(f'v_and_b32 v13, 15, {vLANE}'); A('v_xor_b32 v13, v13, v12'); A('v_lshlrev_b32 v13, 4, v13')
        A(f'v_lshl_add_u32 v{XA}, v12, 10, v13')
        for i in range(1, 4): A(f'v_xor_b32 v{XA+i}, {64*i}, v{XA}')
        A(f'v_lshlrev_b32 v14, 7, {vLANE}')
        A(f's_lshl_b32 s3, s3, 2'); A(f's_add_u32 s3, s3, {sW}'); A('s_lshl_b32 s3, s3, 9')
        A('v_add_u32 v15, s3, v14'); A('v_min_u32 v15, L_codeend-L_pc-4, v15')
        A('s_getpc_b64 s[2:3]'); A('L_pc:')
        A('s_waitcnt lgkmcnt(0)')
        def srd(base, p, n):
            A(f's_mov_b32 s{base}, s{p}'); A(f's_mov_b32 s{base+1}, s{p+1}'); A(f's_mov_b32 s{base+2}, {hx(n)}'); A(f's_mov_b32 s{base+3}, 0x20000')
        srd(4, 80, 0x200000); srd(8, 82, 0x180000)
        A(f's_load_dword {sNON}, s[78:79], {EPOCH}')
        A(f's_lshl_b32 s80, {sC}, 17'); A(f's_lshl_b32 s81, {sJ}, 13'); A('s_add_u32 s80, s80, s81'); A(f's_lshl_b32 s81, {sW}, 11'); A('s_add_u32 s80, s80, s81')
        A('s_mov_b64 exec, 0xffff')
        A(f'buffer_load_dword v255, v14, {S_X0}, s80 offen')
        A('s_mov_b64 exec, 0xf')
        A('global_load_dword v254, v15, s[2:3]')
        A('s_mov_b64 exec, -1')
        srd(12, 88, 0x180000); srd(16, 84, 0x80000); srd(20, 90, 0x80000); srd(24, 78, WS_BYTES); srd(28, 92, 0x200000)
        for g in range(4):
            A(f's_add_u32 s{84+g}, {sROT}, {g}'); A(f's_and_b32 s{84+g}, s{84+g}, 3')
        A(f's_mul_i32 s88, {sW}, {32*3072}'); A(f's_lshl_b32 s89, {sJ}, 6'); A('s_add_u32 s88, s88, s89')
        for g in range(4):
            A(f's_mul_i32 s{80+g}, s{84+g}, {128*3072}'); A(f's_add_u32 s{80+g}, s{80+g}, s88')
        A(f's_lshl_b32 s88, {sW}, 11')
        A(f's_lshl_b32 s89, {sW}, 14'); A(f's_add_u32 s89, s89, {WO}')
        A(f's_lshl_b32 s90, {sTB}, 15')
        def wdma(g, blocks):
            Q = []
            for (col, reg) in blocks:
                for i in range(2):
                    Q.append(f's_lshl_b32 s91, s{84+g}, 13\ns_add_u32 s91, s91, s88\ns_add_u32 m0, s91, {reg+1024*i}\n'
                             f's_add_u32 s91, s{80+g}, {col+i*16*3072}\nbuffer_load_dwordx4 {vWQ}, {S_WA}, s91 offen lds')
            return Q
        def xdma(g):
            Q = []
            for i in range(8):
                Q.append(f's_lshl_b32 s91, s{84+g}, 8\ns_add_u32 s91, s91, s90\ns_add_u32 m0, s89, {(g&1)*8192+1024*i}\n'
                         f's_add_u32 s91, s91, {4096*i}\nbuffer_load_dwordx4 v{XA+(i&3)}, {S_X0}, s91 offen lds')
            return Q
        KV = [(1024, WK), (2048, WV)]
        tW = {}; tX = {}
        for g in range(2):
            self.pop(wdma(g, KV), 99); tW[g] = A.tok()
            self.pop(xdma(g), 99); tX[g] = A.tok()
        A(f'v_lshlrev_b32 {vL4}, 2, {vLANE}')
        A(f'v_lshrrev_b32 v12, 5, {vLANE}')
        A(f'v_lshlrev_b32 {vTR0}, 9, v12')
        for (o, wd, sh) in [(2, 2, 6), (4, 1, 5), (0, 1, 4), (1, 1, 3)]:
            A(f'v_bfe_u32 v13, {vLANE}, {o}, {wd}'); A(f'v_lshl_add_u32 {vTR0}, v13, {sh}, {vTR0}')
        A(f'v_add_u32 {vTR1}, 0x10000, {vTR0}')
        A(f's_lshl_b32 s91, {sW}, 13'); A(f'v_add_u32 {vBK0}, s91, {vL16}'); A(f'v_add_u32 {vBK1}, 0x10000, {vBK0}')
        A(f'v_add_u32 {vMISC}, {MISC}, {vL16}')
        A(f's_lshl_b32 s91, {sW}, 7'); A(f's_add_u32 s91, s91, {RSB}')
        A(f'v_and_b32 v13, 31, {vLANE}')
        A(f'v_lshl_add_u32 {vRSW}, v13, 2, s91'); A(f'v_lshl_add_u32 {vRSR}, v12, 4, s91')
        A(f'v_and_b32 v15, 15, {vLANE}'); A('v_xor_b32 v15, v15, v12'); A('v_lshlrev_b32 v15, 4, v15')
        A(f'v_lshl_add_u32 v15, v13, 8, v15'); A(f'v_add_u32 v{XRD}, s89, v15')
        for s in range(1, 8): A(f'v_xor_b32 v{XRD+s}, {32*s}, v{XRD}')
        A(f'v_lshrrev_b32 v15, 3, v13'); A(f'v_mov_b32 v16, {hx(ONES)}')
        for b in range(2):
            A(f'v_cmp_eq_u32 vcc, {b}, v15')
            for i in range(4): A(f'v_cndmask_b32 v{QF+4*b+i}, 0, v16, vcc')
        for i in range(4): A(f'v_mov_b32 v{AQ+12+i}, 0')
        self.pop(self.cs_addr(17), 9)
        for r in range(16):
            m = 0
            for l in range(64):
                if 8*(r >> 2) + 4*(l >> 5) + (r & 3) <= (l & 31): m |= 1 << l
            A(f's_mov_b32 s{32+2*r}, {hx(m)}'); A(f's_mov_b32 s{33+2*r}, {hx(m >> 32)}')
        A('s_mov_b32 s96, 0xffff0000'); A('s_mov_b32 s97, 0xffff0000')
        A(f's_lshl_b32 s91, {sTB}, 15'); A(f's_add_u32 {sXO}, s91, {XB}'); A(f's_add_u32 {sOO}, s91, {OB}')
        A(f's_lshl_b32 s91, {sTB}, 12'); A(f's_add_u32 {sST}, s91, {STAT}')
        A(f's_lshl_b32 s91, {sTB}, 7'); A(f's_add_u32 {sXF}, s91, {XF}'); A(f's_add_u32 {sOF}, s91, {OF}')
        A(f's_getreg_b32 {sXCC}, hwreg(HW_REG_XCC_ID, 0, 4)')
        A('s_waitcnt lgkmcnt(0)')
        A(f's_add_u32 {sNON}, {sNON}, 0x9e3779b9')
        self.stamp('start')
        D0, D1, D2, D3 = AQ+12, AQ+13, AQ+14, AQ+15
        def dots(g):
            Q = []
            for s in range(8):
                for i in range(4):
                    r = XR + 4*(8*g+s) + i
                    Q.append(f'v_dot2c_f32_bf16 v{D0+(i&1)}, v{r}, v16')
                    Q.append(f'v_dot2c_f32_bf16 v{D2+(i&1)}, v{r}, v{r}')
            return Q
        self.misc_setup = []
        for g in range(4):
            A.wait(vm=tX[g])
            for s in range(8): A(f'ds_read_b128 {vr(XR+4*(8*g+s),4)}, v{XRD+s} offset:{(g&1)*8192}')
            A(f's_lshl_b32 s91, s{84+g}, 13'); A(f'v_add_u32 v12, s91, {vTR0}'); A(f'v_add_u32 v13, s88, v12')
            A.wait(lg='all')
            F = []; dq = dots(g)
            if g < 2:
                F += xdma(g+2); F.append(lambda g=g: tX.__setitem__(g+2, A.tok()))
                F += wdma(g+2, KV); F.append(lambda g=g: tW.__setitem__(g+2, A.tok()))
                self.pop(F, 4)
            if g == 2:
                for gg in range(4): F += wdma(gg, [(0, WQ)])
                F.append(lambda: setattr(self, 'tWQ', A.tok()))
            if g == 3:
                self.pop(dq, 99)
            A.wait(vm=tW[g])
            A('s_barrier')
            if self.debug and g in (0, 3): self.stamp(f'chunk{g}')
            self.tr(WF+16, 'v13', WK); self.tr(WF+20, 'v13', WV); self.tr(WF+24, 'v13', WK+1024); tcs = self.tr(WF+28, 'v13', WV+1024)
            tw = {}
            def rd(s):
                q = WF + 8*(s & 3)
                self.tr(q, 'v12', WK + 1024*s); tw[s] = self.tr(q+4, 'v12', WV + 1024*s)
            rd(0)
            if g == 3:
                dq = [f'v_add_f32 v{D0}, v{D0}, v{D1}', f'v_add_f32 v{D2}, v{D2}, v{D3}', f'v_permlane32_swap_b32 v{D0}, v{D2}',
                      f'v_add_f32 v14, v{D0}, v{D2}'] + self.stats_finish(14, True)
                dq += self.cs_write(RES, 14, 'v17', 0*1024) + self.cs_write(RES+4, 14, 'v17', 1*1024)
                def fin():
                    A.wait(lg='all'); A('s_barrier')
                dq.append(fin)
                F += self.late_setup()
            self.pop(dq, 6)
            A.wait(lg=tcs)
            self.mfma(RES, QF, WF+16, None if g == 0 else RES); self.pop(dq, 3)
            self.mfma(RES, QF+4, WF+20, RES); rd(1); self.pop(dq, 2)
            self.mfma(RES, QF, WF+24, RES); self.pop(dq, 3); self.pop(F, 1)
            self.mfma(RES, QF+4, WF+28, RES); self.pop(dq, 3); self.pop(F, 1)
            for s in range(8):
                q = WF + 8*(s & 3); x = XR + 4*(8*g+s)
                first = (g == 0 and s == 0)
                A.wait(lg=tw[s])
                self.mfma(AK, x, q, None if first else AK)
                if s + 2 < 8: rd(s+2)
                self.pop(dq, 3); self.pop(F, 1)
                self.mfma(AV, x, q+4, None if first else AV)
                self.pop(dq, 3); self.pop(F, 1)
            self.pop(dq, 99); self.pop(F, 99)
        A(f'ds_read_b128 {vr(WF,4)}, {vMISC} offset:{CST-MISC}')
        t = A(f'ds_read_b128 {vr(WF+4,4)}, {vMISC} offset:{CST-MISC+1024}')
        A.wait(lg=t)
        self.mfma(AK, MU, WF, AK); self.mfma(AV, MU, WF+4, AV)

    def late_setup(self):
        A = self.A
        F = []
        t = QF
        F.append(f'v_mov_b32 v{t}, {sNON}\nv_mov_b32 v{t+1}, {sXCC}\nv_mov_b32 v{t+2}, 0\n'
                 f's_lshl_b32 s91, {sC}, 7\ns_lshl_b32 s92, {sJ}, 3\ns_add_u32 s91, s91, s92\ns_add_u32 s91, s91, {IDF}\n'
                 f's_mov_b64 exec, 1\nbuffer_store_dwordx2 {vr(t,2)}, v{t+2}, {S_WS}, s91 offen sc1\ns_mov_b64 exec, -1')
        return [F[0]] + self.bk_load(S_OA, 'v19', 1024, 0, 192, 's90')

    def late_setup2(self):
        F = []
        t = AV
        F.append(f'v_mov_b32 v{t}, {hx(ONES)}\nv_mov_b32 v{t+1}, {hx(ONES)}\nv_mov_b32 v{t+2}, {hx(ONES)}\nv_mov_b32 v{t+3}, {hx(ONES)}')
        F.append(f'v_lshrrev_b32 v{t+4}, 3, {vLANE}\nv_lshl_add_u32 v{t+4}, v{t+4}, 10, {vL16}\n'
                 f's_lshl_b32 s91, {sJ}, 6\ns_add_u32 s91, s91, {sTB}\ns_mul_i32 s91, s91, {REC}\ns_add_u32 s91, s91, {KVB}')
        F.append(f's_mov_b64 exec, 0xffff\nbuffer_store_dwordx4 {vr(t,4)}, v{t+4}, {S_WS}, s91 offen offset:3072 sc1\n'
                 f's_add_u32 s91, s91, {KVB_L}\nbuffer_store_dwordx4 {vr(t,4)}, v{t+4}, {S_WS}, s91 offen offset:3072 sc1\ns_mov_b64 exec, -1')
        F.append(f'v_and_b32 v{t+5}, 15, {vLANE}\nv_lshlrev_b32 v{t+5}, 7, v{t+5}\nv_lshrrev_b32 v{t+6}, 4, {vLANE}\nv_lshl_add_u32 v{t+5}, v{t+6}, 21, v{t+5}\n'
                 f'v_lshlrev_b32 v{t+6}, 13, {vLANE}')
        F.append(f's_lshl_b32 s91, {sJ}, 11\ns_add_u32 s91, s91, {sXO}\ns_mov_b64 exec, 0xffffffff\nbuffer_load_dword v{t+8}, v{t+5}, {S_WS}, s91 offen\n'
                 f's_lshl_b32 s91, {sJ}, 8\ns_add_u32 s91, s91, {sST}\ns_mov_b64 exec, 3\nbuffer_load_dword v{t+9}, v{t+5}, {S_WS}, s91 offen\n'
                 f'buffer_load_dword v{t+10}, v{t+6}, {S_WS}, {sXF} offen\ns_mov_b64 exec, -1')
        F.append(f'v_and_b32 v{t+7}, 31, {vLANE}\nv_lshlrev_b32 v{t+7}, 10, v{t+7}\nv_lshrrev_b32 v{t+11}, 5, {vLANE}\nv_lshl_add_u32 v{t+7}, v{t+11}, 4, v{t+7}\n'
                 f's_lshl_b32 s91, {sTB}, 15\ns_lshl_b32 s92, {sJ}, 6\ns_add_u32 s91, s91, s92')
        F.append(f'buffer_load_dwordx4 {vr(RES+4,4)}, v{t+7}, {S_X0}, s91 offen\nbuffer_load_dwordx4 {vr(RES+12,4)}, v{t+7}, {S_X0}, s91 offen offset:32')
        return F

    def unpack_res(self):
        Q = []
        for u in range(2):
            for i in range(4):
                s = RES + 8*u + 4 + i; d = RES + 8*u + 2*i
                if d + 1 == s or d == s:
                    Q.append(f'v_lshlrev_b32 v12, 16, v{s}\nv_and_b32 v{d+1}, 0xffff0000, v{s}\nv_mov_b32 v{d}, v12')
                else:
                    Q.append(f'v_lshlrev_b32 v{d}, 16, v{s}\nv_and_b32 v{d+1}, 0xffff0000, v{s}')
        return Q

    def pass1(self, L):
        A = self.A; isA = (L % 2 == 0); mat = L % 2
        tx = {}; tw = {}
        def ldx(s):
            if s % 4 == 0: A(f's_add_u32 s90, {sXO}, {1024*s}')
            tx[s] = A(f'buffer_load_dwordx4 {vr(XR+4*s,4)}, {vL16}, {S_WS}, s90 offen offset:{(s%4)*1024} sc1')
        def rd(s):
            q = WF + 8*(s & 3)
            if s < 32:
                self.tr(q, vTR0, WK + 1024*s); tw[s] = self.tr(q+4, vTR0, WV + 1024*s)
            else:
                A(f'ds_read_b128 {vr(q,4)}, {vMISC} offset:{CST-MISC+(3*mat)*1024}')
                tw[s] = A(f'ds_read_b128 {vr(q+4,4)}, {vMISC} offset:{CST-MISC+(3*mat+1)*1024}')
        for s in range(8): ldx(s)
        rd(0); rd(1)
        st = {}
        F = [lambda i=i: st.__setitem__(i, A(f'buffer_load_dwordx4 {vr(AQ+4*i,4)}, {vL16}, {S_WS}, {sST} offen offset:{1024*i} sc1')) for i in range(4)]
        G = [lambda: A.wait(vm=st[3])]
        for i in range(4): G.append(f'v_pk_add_f32 {vr(AQ+2*i,2)}, {vr(AQ+2*i,2)}, {vr(AQ+8+2*i,2)}')
        for i in range(2): G.append(f'v_pk_add_f32 {vr(AQ+2*i,2)}, {vr(AQ+2*i,2)}, {vr(AQ+4+2*i,2)}')
        G.append(f'v_pk_add_f32 {vr(AQ,2)}, {vr(AQ,2)}, {vr(AQ+2,2)}')
        G.append(f'v_add_f32 v14, v{AQ}, v{AQ+1}')
        G += self.stats_finish(14, isA)
        for s in range(33):
            q = WF + 8*(s & 3); x = XR + 4*s if s < 32 else MU
            A.wait(vm=tx.get(s), lg=tw[s])
            if isA: self.mfma(AK, x, q, None if s == 0 else AK)
            else:   self.mfma(AK, q, x, None if s == 0 else AK)
            if s + 2 <= 32: rd(s+2)
            if s >= 13: self.pop(G, 1)
            self.mfma(AV, x, q+4, None if s == 0 else AV)
            if s + 8 < 32: ldx(s+8)
            self.pop(F, 1)
            if s >= 13: self.pop(G, 2)
        assert not G and not F

    def pass2(self, L, F, pre=None, rotated=False, nfill=1):
        A = self.A; mat = L % 2
        tw = pre if pre else {}
        def rd(s):
            q = WF + 4*((s + 4) & 7)
            if s < 32:
                if rotated:
                    if s % 8 == 0: A(f's_lshl_b32 s91, s{84+s//8}, 13'); A(f'v_add_u32 v{12+(s//8&1)}, s91, {vTR1}')
                    tw[s] = self.tr(q, f'v{12+(s//8&1)}', WQ - 65536 + 1024*(s & 7))
                else: tw[s] = self.tr(q, vTR1, WQ - 65536 + 1024*s)
            else: tw[s] = A(f'ds_read_b128 {vr(q,4)}, {vMISC} offset:{CST-MISC+(3*mat+2)*1024}')
        if pre is None:
            for s in range(4): rd(s)
        for s in range(33):
            q = WF + 4*((s + 4) & 7); x = XR + 4*s if s < 32 else MU
            A.wait(lg=tw[s])
            self.mfma(AQ, q, x, None if s == 0 else AQ)
            if s + 4 == 32: self.pop(F, 99)
            if s + 4 <= 32: rd(s+4)
            self.pop(F, nfill)
    def pass2_pre(self):
        return {s: self.tr(WF + 4*(s+4), vTR1, WQ - 65536 + 1024*s) for s in range(4)}

    def phi(self, acc, e, dst):
        A = self.A
        A(f's_mov_b32 s92, {hx(f2u(LN2))}'); A(f's_mov_b32 s93, {hx(f2u(1e-6))}')
        for i in range(16): A(f'v_exp_f32_e64 v{e+i}, v{acc+i} clamp')
        for i in range(8): A(f'v_pk_fma_f32 {vr(acc+2*i,2)}, {vr(acc+2*i,2)}, s[92:93], s[92:93] op_sel:[0,0,1] op_sel_hi:[1,0,1]')
        for i in range(16): A(f'v_max_f32 v{acc+i}, s93, v{acc+i}')
        for i in range(8): A(f'v_pk_add_f32 {vr(acc+2*i,2)}, {vr(acc+2*i,2)}, {vr(e+2*i,2)}')
        for i in range(8): A(f'v_cvt_pk_bf16_f32 v{dst+i}, v{acc+2*i}, v{acc+2*i+1}')

    def layerA(self, L):
        A = self.A; la = L // 2
        A.wait(lg='all')
        self.stamp(f'L{L} pass1')
        A(f's_mul_i32 s91, {sW}, 3072'); A(f'v_add_u32 v12, s91, {vMISC}')
        A(f's_lshl_b32 s91, {sW}, 10'); A(f'v_add_u32 v13, s91, {vMISC}')
        A(f's_mul_i32 s90, {sJ}, 3'); A(f's_add_u32 s90, s90, {sW}'); A('s_lshl_b32 s90, s90, 14'); A(f's_add_u32 s89, s90, {PART + la*PART_L}')
        A(f's_lshl_b32 s90, {sC}, 10'); A('s_add_u32 s90, s90, s89')
        A(f's_add_u32 s88, {sNON}, {16+L}')
        for i in range(8): A(f'v_pk_mul_f32 {vr(AK+2*i,2)}, {vr(AK+2*i,2)}, {vr(AQ+2*i,2)}')
        for i in range(8): A(f'v_pk_mul_f32 {vr(AV+2*i,2)}, {vr(AV+2*i,2)}, {vr(AQ+2*i,2)}')
        for i in range(8): A(f'v_cvt_pk_bf16_f32 v{WF+8+i}, v{AV+2*i}, v{AV+2*i+1}')
        self.phi(AK, WF+16, WF)
        for i in range(4): A(f'v_mov_b32 v{WF+16+i}, {hx(ONES)}')
        self.mfma(AV, WF, WF+8, None); self.mfma(AV, WF+4, WF+12, AV)
        self.mfma(AK, WF+16, WF, None); self.mfma(AK, WF+16, WF+4, AK)
        G = WF + 20
        for i in range(8): A(f'v_cndmask_b32_e64 v{G+4*(i//3)+i%3}, v{AV+i}, v{AV+8+i}, {sHALF}')
        A(f'ds_write_b96 v12, {vr(G,3)}'); A(f'ds_write_b96 v12, {vr(G+4,3)} offset:1024')
        A(f'v_mov_b32 v{G+10}, v{AK}')
        A(f'ds_write_b96 v12, {vr(G+8,3)} offset:2048')
        if L == 0: A.wait(vm=self.tWQ)
        A.wait(lg='all'); A('s_barrier')
        lsk = A.lab('nopart')
        A(f's_cmp_eq_u32 {sW}, 3'); A(f's_cbranch_scc1 {lsk}')
        A.cond_begin()
        for p in range(4): t = A(f'ds_read_b96 {vr(WF+4*p,3)}, v13 offset:{3072*p}')
        A(f'v_mov_b32 v{WF+3}, s88')
        A.wait(lg=t)
        A(f'v_pk_add_f32 {vr(WF,2)}, {vr(WF,2)}, {vr(WF+4,2)}'); A(f'v_add_f32 v{WF+2}, v{WF+2}, v{WF+6}')
        A(f'v_pk_add_f32 {vr(WF+8,2)}, {vr(WF+8,2)}, {vr(WF+12,2)}'); A(f'v_add_f32 v{WF+10}, v{WF+10}, v{WF+14}')
        A(f'v_pk_add_f32 {vr(WF,2)}, {vr(WF,2)}, {vr(WF+8,2)}'); A(f'v_add_f32 v{WF+2}, v{WF+2}, v{WF+10}')
        A(f'buffer_store_dwordx4 {vr(WF,4)}, {vL16}, {S_WS}, s90 offen sc1')
        A.cond_end()
        A(f'{lsk}:')
        self.stamp(f'L{L} part')
        F = []
        if L == 0:
            A(f's_lshl_b32 s83, {sC}, 7'); A(f's_add_u32 s83, s83, {IDF}')
            A(f'v_lshlrev_b32 v16, 3, {vLANE}')
            A('s_mov_b64 exec, 0xffff')
            tid = A(f'buffer_load_dwordx2 v[14:15], v16, {S_WS}, s83 offen sc1')
            A('s_mov_b64 exec, -1')
            A(f's_lshl_b32 s91, {sW}, 13'); A(f'v_add_u32 v13, s91, {vTR1}')
            for i in range(4): A(f'v_mov_b32 v{QF+i}, {hx(ONES)}')
            tc = {}
            F2 = self.late_setup2()
            for s in range(6): tc[s] = self.tr(WF+4*s, 'v13', WQ - 65536 + 1024*s)
            for s in range(8):
                A.wait(lg=tc[s])
                self.mfma(AK, QF, WF+4*s, None if s == 0 else AK)
                if s + 6 < 8: tc[s+6] = self.tr(WF+4*(s+6), 'v13', WQ - 65536 + 1024*(s+6))
                self.pop(F2, 1)
            self.tres = A.tok()
            F = ['s_nop 0'] * 3 + self.cs_write(AK, QF+4, 'v17', 2*1024)
            def fin():
                A.wait(lg='all'); A('s_barrier')
            F.append(fin)
            F += self.bk_load(S_WB, 'v18', 3072, 1024, 96, 's82')
            F += self.bk_load(S_WB, 'v18', 3072, 2048, 128, 's82')
        self.pass2(L, F, rotated=(L == 0))
        for i in range(8): A(f'v_pk_mul_f32 {vr(AQ+2*i,2)}, {vr(AQ+2*i,2)}, v[8:9] op_sel_hi:[1,0]')
        self.phi(AQ, WF+16, QF)
        if L == 0:
            lo, lb = A.lab('ido'), A.lab('idb')
            A('s_mov_b64 exec, 0xffff')
            A.wait(vm=tid)
            A(f'v_cmp_ne_u32 vcc, {sNON}, v14'); A(f's_cbranch_vccnz {lo}')
            A(f'{lb}:')
            A.tail += [f'{lo}:', f'buffer_load_dwordx2 v[14:15], v16, {S_WS}, s83 offen sc1',
                       f's_add_u32 {sSPIN}, {sSPIN}, 1', f's_cmp_lt_u32 {sSPIN}, {SPIN_LIMIT}', 's_cselect_b64 s[94:95], -1, 0',
                       's_waitcnt vmcnt(0)', f'v_cmp_ne_u32 vcc, {sNON}, v14', 's_and_b64 vcc, vcc, s[94:95]', f's_cbranch_scc1 {lo}', f's_branch {lb}']
            A(f'v_cmp_ne_u32 vcc, {sXCC}, v15')
            A('s_mov_b64 exec, -1')
            A('s_cmp_lg_u64 vcc, 0')
            A(f's_cselect_b32 {sMODE}, 1, 0'); A(f's_cselect_b32 {sSLOW}, {hx(SLOW)}, 0')
            if self.force_slow: A(f's_mov_b32 {sMODE}, 1'); A(f's_mov_b32 {sSLOW}, {hx(SLOW)}')
        self.stamp(f'L{L} pass2')
        A(f's_mul_i32 s91, {sW}, 12'); A(f's_add_u32 s91, s91, {TOT}')
        A(f'v_lshl_add_u32 v14, {vLANE}, 5, s91')
        A(f'v_and_b32 v15, 3, {vLANE}'); A(f'v_bfe_u32 v16, {vLANE}, 2, 1'); A('v_lshl_add_u32 v15, v16, 3, v15')
        A(f'v_bfe_u32 v16, {vLANE}, 3, 1'); A('v_lshl_add_u32 v15, v16, 2, v15')
        A(f'v_bfe_u32 v16, {vLANE}, 4, 1'); A('v_lshl_add_u32 v15, v16, 7, v15')
        A(f'v_lshlrev_b32 v15, 2, v15'); A(f'v_add_u32 v15, {ZOF}, v15')
        A('v_add_u32 v16, 8, v14')
        A(f's_cmp_eq_u32 {sW}, 2'); A('s_cselect_b64 vcc, -1, 0'); A('v_cndmask_b32 v15, v16, v15, vcc')
        A(f'v_lshrrev_b32 v16, 5, {vLANE}'); A('v_lshlrev_b32 v16, 5, v16'); A(f'v_add_u32 v16, {ZOF}, v16')
        A(f'v_lshlrev_b32 v13, 5, {vLANE}'); A(f'v_add_u32 v13, {TOT}, v13')
        A(f'v_cndmask_b32_e64 v16, v13, v16, {sHALF}')
        lsk = A.lab('nogather'); lre = A.lab('gather')
        W = []
        if L == 0:
            W = self.bk_save(WK, 0) + self.bk_save(WV, 32) + self.bk_save(WQ, 64) + self.bk_write(WO, 192)
        else:
            W = self.bk_write(WK, 96) + self.bk_write(WV, 128)
        if L == 0: A.wait(vm=self.tres)
        A(f's_cmp_eq_u32 {sW}, 3'); A(f's_cbranch_scc1 {lsk}')
        A.cond_begin()
        A(f'{lre}:')
        tg = {}
        for p in range(16):
            if p % 4 == 0: A(f's_add_u32 s90, s89, {1024*p}')
            tg[p] = A(f'buffer_load_dwordx4 {vr(XR+4*p,4)}, {vL16}, {S_WS}, s90 offen offset:{(p%4)*1024} sc1')
        A(f's_add_u32 {sSPIN}, {sSPIN}, 1'); A(f's_cmp_lt_u32 {sSPIN}, {SPIN_LIMIT}'); A('s_cselect_b64 s[94:95], -1, 0')
        A.wait(vm=tg[0])
        A(f'v_xor_b32 v{XR+3}, s88, v{XR+3}')
        for p in range(1, 16):
            A.wait(vm=tg[p])
            A(f'v_pk_add_f32 {vr(XR,2)}, {vr(XR,2)}, {vr(XR+4*p,2)}')
            A(f'v_add_f32 v{XR+2}, v{XR+2}, v{XR+4*p+2}')
            A(f'v_bitop3_b32 v{XR+3}, v{XR+3}, v{XR+4*p+3}, s88 bitop3:0xf6')
        A(f'v_cmp_ne_u32 vcc, 0, v{XR+3}'); A('s_and_b64 vcc, vcc, s[94:95]'); A(f's_cbranch_scc1 {lre}')
        A(f'ds_write2_b32 v14, v{XR}, v{XR+1} offset0:0 offset1:1')
        A(f'ds_write_b32 v15, v{XR+2}')
        A.cond_end()
        A(f'{lsk}:')
        self.pop(W, 99)
        if L == 0: self.pop(self.unpack_res(), 99)
        A.wait(lg='all'); A('s_barrier')
        self.stamp(f'L{L} gather')
        for H in range(2):
            A(f'ds_read_b128 {vr(WF+8*H,4)}, v16 offset:{512*H}'); A(f'ds_read_b128 {vr(WF+8*H+4,4)}, v16 offset:{512*H+16}')
        A(f's_add_u32 {sOO}, {sOO}, {sSLOW}')
        A(f's_lshl_b32 s90, {sJ}, 11'); A(f's_add_u32 s90, s90, {sOO}')
        A(f's_lshl_b32 s91, {sJ}, 3'); A(f's_add_u32 s91, s91, {sOF}')
        A(f's_add_u32 s88, {sNON}, {8+L}')
        A('v_mov_b32 v12, s88'); A('v_mov_b32 v13, s88'); A('v_mov_b32 v14, 0')
        A.wait(lg='all')
        for H in range(2):
            for i in range(4): A(f'v_cvt_pk_bf16_f32 v{WF+16+4*H+i}, v{WF+8*H+2*i}, v{WF+8*H+2*i+1}')
        self.mfma(AK, WF+16, QF, None); self.mfma(AV, WF+20, QF+4, None)
        for H in range(2):
            a = AK + 16*H
            A(f'v_add_f32 v{a+8}, {hx(f2u(1e-6))}, v{a+8}')
            A(f'v_rcp_f32 v{a+8}, v{a+8}')
            A(f'v_mul_f32 v{a+8}, {hx(f2u(LN2))}, v{a+8}')
            for i in range(4): A(f'v_pk_mul_f32 {vr(a+2*i,2)}, {vr(a+2*i,2)}, {vr(a+8,2)} op_sel_hi:[1,0]')
            for i in range(4): A(f'v_cvt_pk_bf16_f32 v{WF+24+4*H+i}, v{a+2*i}, v{a+2*i+1}')
        t = self.moded([f'buffer_store_dwordx4 {vr(WF+24,4)}, {vL16}, {S_WS}, s90 offen',
                        f'buffer_store_dwordx4 {vr(WF+28,4)}, {vL16}, {S_WS}, s90 offen offset:1024'])
        if L == 0: W = self.bk_write(WK, 96) + self.bk_write(WV, 128)
        else: W = self.bk_write(WQ, 160)
        if L != 0: self.pop(W, 4)
        A.wait(vm=t)
        A('s_mov_b64 exec, 1')
        self.moded([f'buffer_store_dwordx2 v[12:13], v14, {S_WS}, s91 offen'])
        A('s_mov_b64 exec, -1')
        self.stamp(f'L{L} opub')
        return W

    def outproj(self, L, W):
        A = self.A; last = (L == self.nl - 1)
        self.pop(W, 4)
        A(f's_add_u32 s88, {sNON}, {8+L}')
        self.poll(sOF, '0xffffffff', 's88')
        self.stamp(f'L{L} opoll')
        to = {}; tw = {}
        def ldo(s):
            if s % 4 == 0: A(f's_add_u32 s90, {sOO}, {1024*s}')
            to[s] = A(f'buffer_load_dwordx4 {vr(XR+4*s,4)}, {vL16}, {S_WS}, s90 offen offset:{(s%4)*1024} sc1')
        def rd(s): tw[s] = self.tr(WF + 4*(s & 7), vTR1, WO - 65536 + 1024*s)
        for s in range(8): ldo(s)
        self.pop(W, 4)
        for s in range(4): rd(s)
        F = []
        if L == 0: F = self.bk_load(S_WB, 'v18', 3072, 0, 160, 's82')
        for s in range(32):
            A.wait(vm=to[s], lg=tw[s])
            self.mfma(RES, WF + 4*(s & 7), XR + 4*s, RES)
            if s + 8 < 32: ldo(s+8)
            else: self.pop(F, 2)
            if s + 4 < 32: rd(s+4)
            self.pop(W, 1)
        assert not W and not F
        tq = A.tok()
        if last:
            A(f'v_and_b32 v12, 31, {vLANE}'); A('v_lshlrev_b32 v12, 10, v12'); A(f'v_lshrrev_b32 v13, 5, {vLANE}'); A('v_lshl_add_u32 v12, v13, 4, v12')
            A(f's_lshl_b32 s91, {sTB}, 15'); A(f's_lshl_b32 s92, {sJ}, 6'); A('s_add_u32 s91, s91, s92')
        else:
            A(f's_add_u32 {sXO}, {sXO}, {sSLOW}'); A(f's_add_u32 {sST}, {sST}, {sSLOW}')
            A(f's_lshl_b32 s90, {sJ}, 11'); A(f's_add_u32 s90, s90, {sXO}')
            A(f's_lshr_b32 s91, {sJ}, 2'); A('s_lshl_b32 s91, s91, 10'); A(f's_and_b32 s92, {sJ}, 3'); A('s_lshl_b32 s92, s92, 2')
            A('s_add_u32 s91, s91, s92'); A(f's_add_u32 s91, s91, {sST}')
            A(f's_lshl_b32 s92, {sJ}, 2'); A(f's_add_u32 s92, s92, {sXF}')
            A(f's_add_u32 s88, {sNON}, {L+1}')
        for i in range(8): A(f'v_cvt_pk_bf16_f32 v{WF+i}, v{RES+2*i}, v{RES+2*i+1}')
        if last:
            A(f'buffer_store_dwordx4 {vr(WF,4)}, v12, {S_OUT}, s91 offen')
            A(f'buffer_store_dwordx4 {vr(WF+4,4)}, v12, {S_OUT}, s91 offen offset:32')
            self.stamp(f'L{L} out')
            return
        self.moded([f'buffer_store_dwordx4 {vr(WF,4)}, {vL16}, {S_WS}, s90 offen',
                    f'buffer_store_dwordx4 {vr(WF+4,4)}, {vL16}, {S_WS}, s90 offen offset:1024'])
        A(f'v_pk_add_f32 v[12:13], {vr(RES,2)}, {vr(RES+2,2)}'); A(f'v_pk_mul_f32 v[14:15], {vr(RES,2)}, {vr(RES,2)}')
        A(f'v_pk_fma_f32 v[14:15], {vr(RES+2,2)}, {vr(RES+2,2)}, v[14:15]')
        for i in range(2, 8):
            A(f'v_pk_add_f32 v[12:13], v[12:13], {vr(RES+2*i,2)}'); A(f'v_pk_fma_f32 v[14:15], {vr(RES+2*i,2)}, {vr(RES+2*i,2)}, v[14:15]')
        A('v_add_f32 v12, v12, v13'); A('v_add_f32 v14, v14, v15')
        A('v_mov_b32 v16, s88'); A('v_mov_b32 v13, 0')
        A('v_permlane32_swap_b32 v12, v14'); A('v_add_f32 v12, v12, v14')
        t = self.moded([f'buffer_store_dword v12, {vL16}, {S_WS}, s91 offen'])
        A.wait(vm=t)
        A('s_mov_b64 exec, 1')
        self.moded([f'buffer_store_dword v16, v13, {S_WS}, s92 offen'])
        A('s_mov_b64 exec, -1')
        self.stamp(f'L{L} xpub')
        if L == 0:
            self.pop(self.bk_write(WQ, 160), 99)
            A(f's_lshl_b32 s91, {sW}, 13'); A(f'v_add_u32 v12, s91, {vTR0}'); A(f'v_add_u32 v13, s91, {vTR1}')
            for i in range(4): A(f'v_mov_b32 v{QF+i}, {hx(ONES)}')
            tc = {}
            def rc(n):
                b, s = divmod(n, 8)
                tc[n] = self.tr(WF + 4*(n & 7), 'v12' if b < 2 else 'v13', [WK, WV, WQ-65536][b] + 1024*s)
            for n in range(6): rc(n)
            for n in range(24):
                A.wait(lg=tc[n])
                acc = [AK, AV, AQ][n // 8]
                self.mfma(acc, QF, WF + 4*(n & 7), None if n % 8 == 0 else acc)
                if n + 6 < 24: rc(n+6)
            for b in range(3): self.pop(self.cs_write([AK, AV, AQ][b], 14, 'v17', (3+b)*1024), 99)
        A.wait(lg='all'); A('s_barrier')
        if L == 0:
            pass
        else:
            self.pop(self.bk_write(WO, 192 if L % 2 == 1 else 224), 99)
        self.poll(sXF, '0xffff', 's88')
        self.stamp(f'L{L} xpoll')

    def layerB(self, L):
        A = self.A; lb = L // 2; last = (L == self.nl - 1)
        self.stamp(f'L{L} pass1')
        pre = self.pass2_pre()
        A(f's_mul_i32 s91, {sW}, {REC}'); A(f'v_add_u32 v12, s91, {vMISC}')
        A(f's_lshl_b32 s91, {sW}, 11'); A(f'v_add_u32 v13, s91, {vMISC}')
        A(f's_lshl_b32 s89, {sJ}, 6'); A(f's_add_u32 s89, s89, {sTB}')
        A(f's_mul_i32 s90, s89, {REC}'); A(f's_add_u32 s90, s90, {KVB + lb*KVB_L}')
        A(f's_lshl_b32 s89, s89, 7'); A(f's_add_u32 s89, s89, {KVF + lb*KVF_L}')
        A(f'v_lshrrev_b32 v14, 3, {vLANE}'); A(f'v_lshl_add_u32 v14, v14, 10, v12')
        for i in range(4): A(f'v_mov_b32 v{QF+i}, {hx(ONES)}')
        for i in range(8): A(f'v_pk_mul_f32 {vr(AK+2*i,2)}, {vr(AK+2*i,2)}, v[8:9] op_sel_hi:[1,0]')
        for i in range(8): A(f'v_cvt_pk_bf16_f32 v{WF+i}, v{AK+2*i}, v{AK+2*i+1}')
        A(f'buffer_store_dwordx4 {vr(WF,4)}, {vL16}, {S_WS}, s90 offen sc1')
        A(f'buffer_store_dwordx4 {vr(WF+4,4)}, {vL16}, {S_WS}, s90 offen offset:1024 sc1')
        for i in range(8): A(f'v_pk_mul_f32 {vr(AV+2*i,2)}, {vr(AV+2*i,2)}, {vr(AQ+2*i,2)}')
        for i in range(8): A(f'v_cvt_pk_bf16_f32 v{WF+8+i}, v{AV+2*i}, v{AV+2*i+1}')
        A(f'buffer_store_dwordx4 {vr(WF+8,4)}, {vL16}, {S_WS}, s90 offen offset:2048 sc1')
        tst = A(f'buffer_store_dwordx4 {vr(WF+12,4)}, {vL16}, {S_WS}, s90 offen offset:3200 sc1')
        for i, o in enumerate([0, 1024, 2048, 3200]): A(f'ds_write_b128 v12, {vr(WF+4*i,4)} offset:{o}')
        A('s_mov_b64 exec, 0xffff'); A(f'ds_write_b128 v14, {vr(QF,4)} offset:3072'); A('s_mov_b64 exec, -1')
        self.stamp(f'L{L} kvpub')
        F = [f'v_mov_b32 v15, {sNON}', 'v_mov_b32 v16, 0']
        F += [f's_lshr_b32 s88, {sW}, 1', 's_lshl_b32 s91, s88, 10', f'v_add_u32 v17, s91, {vL16}',
              's_lshl_b32 s91, s88, 8', f'v_add_u32 v18, s91, {vL16}', 'v_mov_b32 v12, 1024',
              f'v_cndmask_b32_e64 v18, v18, v12, {sHALF}',
              f'v_mul_f32 {vRSTD}, {hx(f2u(0.25*LOG2E))}, {vRSTD}']
        F += ['s_nop 0'] * (21 - len(F))
        def flag():
            A.wait(vm=tst)
            A('s_mov_b64 exec, 1'); A(f'buffer_store_dword v15, v16, {S_WS}, s89 offen sc1'); A('s_mov_b64 exec, -1')
        F.append(flag)
        self.pass2(L, F, pre=pre)
        A(f'v_add_u32 v14, {MISC}, v17'); A(f'v_add_u32 v15, {MISC}, v18')
        A(f'v_mov_b32 v12, 0xff800000')
        for r in range(16): A(f'v_cndmask_b32_e64 v{WF+r}, v12, 0, s[{32+2*r}:{33+2*r}]')
        for i in range(8): A(f'v_pk_mul_f32 {vr(AQ+2*i,2)}, {vr(AQ+2*i,2)}, v[8:9] op_sel_hi:[1,0]')
        for i in range(8): A(f'v_cvt_pk_bf16_f32 v{QF+i}, v{AQ+2*i}, v{AQ+2*i+1}')
        A(f'ds_write_b128 v13, {vr(QF,4)} offset:{QL-MISC}'); A(f'ds_write_b128 v13, {vr(QF+4,4)} offset:{QL-MISC+1024}')
        A(f's_lshl_b32 s84, {sJ}, 6'); A(f's_lshl_b32 s91, {sC}, 2'); A('s_add_u32 s84, s84, s91')
        A(f's_lshl_b32 s85, s84, 7'); A(f's_add_u32 s85, s85, {KVF + lb*KVF_L - 1024}')
        A(f's_mul_i32 s84, s84, {REC}'); A(f's_add_u32 s84, s84, {KVB + lb*KVB_L}')
        A(f's_cmp_ge_u32 {sC}, 2'); A('s_cselect_b32 s86, 15, 0'); A('s_cselect_b32 s83, 0, 0x40000000')
        A(f's_cmp_ge_u32 {sC}, 1'); A('s_cselect_b32 s87, 0xf0, 0'); A('s_cselect_b32 s82, 0, 0x40000000'); A('s_or_b32 s86, s86, s87'); A('s_mov_b32 s87, 0')
        A(f'v_lshlrev_b32 v13, 7, {vLANE}')
        A.wait(lg='all'); A('s_barrier')
        self.stamp(f'L{L} pass2')
        l1, lj = A.lab('att1'), A.lab('attj')
        A(f's_bitcmp1_b32 {sW}, 0'); A(f's_cbranch_scc1 {l1}')
        A.cond_begin(); self.attn(L, 0); A.cond_end()
        A(f's_branch {lj}')
        A(f'{l1}:')
        A.cond_begin(); self.attn(L, 1); A.cond_end()
        A(f'{lj}:')
        A(f's_add_u32 {sOO}, {sOO}, {sSLOW}')
        A(f's_and_b32 s80, {sW}, 1'); A(f's_sub_u32 s81, 3, s80')
        A(f's_lshr_b32 s88, {sW}, 1'); A(f's_lshl_b32 s91, {sJ}, 1'); A('s_add_u32 s88, s88, s91')
        for X in range(2):
            A(f's_sub_i32 s91, s{80+X}, {sW}')
            A(f's_lshl_b32 s92, s91, 15'); A(f's_add_u32 s92, s92, {sOO}'); A('s_lshl_b32 s93, s88, 10'); A(f's_add_u32 s{86+X}, s92, s93')
            A(f's_lshl_b32 s92, s91, 7'); A(f's_add_u32 s92, s92, {sOF}'); A('s_lshl_b32 s93, s88, 2'); A(f's_add_u32 s{82+X}, s92, s93')
        lo_b, hi_b = f2u(2.0**-64), f2u(2.0**64)
        for X in range(2):
            a = AK + 16*X
            lf, lr = A.lab('fb'), A.lab('fbr')
            A(f'v_subrev_u32 v12, {hx(lo_b)}, v{a+8}')
            A(f'v_cmp_le_u32 vcc, {hx(hi_b - lo_b)}, v12')
            if self.force_fb: A(f's_branch {lf}')
            else: A(f's_cbranch_vccnz {lf}')
            A(f'{lr}:')
            A.tail += [f'{lf}:'] + [f'v_mov_b32 v{XR+12+i}, v{QF+4*X+i}' for i in range(4)]
            A.tail += [f's_mul_i32 s90, s{80+X}, {REC}', 's_add_u32 s90, s90, s84',
                       f's_lshl_b32 s91, {sC}, 2', f's_add_u32 s91, s91, s{80+X}', 's_call_b64 s[92:93], L_fallback', 's_nop 7', 's_nop 7']
            A.tail += [f'v_mov_b32 v{a+i}, v{XR+16+i}' for i in range(9)] + [f's_branch {lr}']
            A(f'v_rcp_f32 v{a+8}, v{a+8}')
            for i in range(4): A(f'v_pk_mul_f32 {vr(a+2*i,2)}, {vr(a+2*i,2)}, {vr(a+8,2)} op_sel_hi:[1,0]')
            for i in range(4): A(f'v_cvt_pk_bf16_f32 v{AQ+8+4*X+i}, v{a+2*i}, v{a+2*i+1}')
            t = self.moded([f'buffer_store_dwordx4 {vr(AQ+8+4*X,4)}, {vL16}, {S_WS}, s{86+X} offen'])
        A(f's_add_u32 s88, {sNON}, {8+L}'); A('v_mov_b32 v12, s88'); A('v_mov_b32 v14, 0')
        W = [] if last else self.bk_write(WK, 0) + self.bk_write(WV, 32) + self.bk_write(WQ, 64)
        self.pop(W, 4)
        A.wait(vm=t)
        A('s_mov_b64 exec, 1')
        self.moded([f'buffer_store_dword v12, v14, {S_WS}, s82 offen', f'buffer_store_dword v12, v14, {S_WS}, s83 offen'])
        A('s_mov_b64 exec, -1')
        if L == 1:
            A.wait(lg='all'); A('s_barrier')
        self.stamp(f'L{L} opub')
        return W

    def attn(self, L, P):
        A = self.A
        a, b = (0, 3) if P == 0 else (1, 2)
        if P == 0:
            steps = [(0,0,'D'),(1,0,''),(1,1,''),(1,2,''),(1,3,'D')]
            far = [(0,-5,''),(1,-5,'F'),(0,-6,''),(0,-7,''),(0,-8,'F')]
        else:
            steps = [(0,0,''),(1,0,''),(0,1,'D'),(1,1,''),(1,2,'D')]
            far = [(0,-5,''),(1,-5,''),(0,-6,''),(1,-6,'F'),(0,-7,'F')]
        for t in range(1, 5): steps += [(0,-t,''),(1,-t,'')]
        steps += far
        nloc = 4 if P == 0 else 3; nfar = 4 if P == 0 else 3
        def treg(t): return XR + 12*(t if t >= 0 else (3 - t if t >= -4 else -5 - t))
        S = [XR+96, XR+112]; PP = AQ; O = [AK, AV]; MD, MF = WF, WF+16
        tk = {}; tv = {}
        tq = A(f'ds_read_b128 {vr(QF,4)}, v14 offset:{QL-MISC+2048*a}')
        def ldl(t):
            r = treg(t)
            tk[t] = (None, A(f'ds_read_b128 {vr(r,4)}, v14 offset:{REC*t}'))
            A(f'ds_read_b128 {vr(r+4,4)}, v15 offset:{REC*t+2048}')
            tv[t] = (None, A(f'ds_read_b128 {vr(r+8,4)}, v15 offset:{REC*t+3200}'))
        def ldg(t):
            r = treg(t)
            def f0(): A(f's_sub_u32 s90, s84, {-t*REC}'); tk[t] = (A(f'buffer_load_dwordx4 {vr(r,4)}, v16, {S_WS}, s90 offen sc1'), None)
            def f1(): A(f'buffer_load_dwordx4 {vr(r+4,4)}, v12, {S_WS}, s90 offen offset:2048 sc1')
            def f2(): tv[t] = (A(f'buffer_load_dwordx4 {vr(r+8,4)}, v12, {S_WS}, s90 offen offset:3200 sc1'), None)
            return [f0, f1, f2]
        ldl(0)
        tq2 = A(f'ds_read_b128 {vr(QF+4,4)}, v14 offset:{QL-MISC+2048*b}')
        for t in range(1, nloc): ldl(t)
        A('s_mov_b64 exec, 0xff')
        tp = A(f'buffer_load_dword v19, v13, {S_WS}, s85 offen sc1')
        A('s_mov_b64 exec, -1')
        for r in range(16): A(f'v_cndmask_b32_e64 v{MF+r}, 0, v12, s[{32+2*r}:{33+2*r}]')
        A('v_add_u32 v16, s82, v17'); A('v_add_u32 v12, s82, v18')
        def qk(n):
            X, t, m = steps[n]
            A.wait(vm=tk[t][0], lg=tk[t][1])
            A.wait(lg=tq2 if X else tq)
            self.mfma(S[n & 1], treg(t), QF + 4*X, {'': None, 'D': MD, 'F': MF}[m])
        seen = set()
        def pv(n, u):
            X, t, m = steps[n]
            A.wait(vm=tv[t][0], lg=tv[t][1])
            c = O[X] if X in seen else None
            seen.add(X)
            self.mfma(O[X], treg(t) + 4 + 4*u, PP + 4*u, c)
        qk(0)
        F = []
        for n in range(18):
            s = S[n & 1]
            if n == 2:
                self.poll('s85', '0xff', sNON, vtmp=19, first=tp, vaddr='v13', valid='s[86:87]')
                for t in range(1, 5): F += ldg(-t)
            if n == 6:
                F += ['v_add_u32 v16, s83, v17', 'v_add_u32 v12, s83, v18']
                for t in range(5, 5 + nfar): F += ldg(-t)
            if n == 9 and L == 1:
                F += [f'v_lshrrev_b32 v19, 2, {vLANE}\nv_and_b32 v13, 3, {vLANE}\nv_lshlrev_b32 v13, 4, v13\nv_lshl_add_u32 v19, v19, 10, v13']
                F += self.bk_load(S_OB, 'v19', 1024, 0, 224, 's81')
                F.append(lambda: setattr(self, 'twoB', A.tok()))
            if n == 16 and L == 1:
                F += [lambda: A.wait(vm=self.twoB)] + self.bk_write(WO, 224)
            for i in range(16):
                A(f'v_exp_f32 v{s+i}, v{s+i}')
                if i == 1 and n > 0: pv(n-1, 1)
                if i == 3 and n + 1 < 18: qk(n+1)
                if i >= 2 and i % 2 == 0: A(f'v_cvt_pk_bf16_f32 v{PP+(i-2)//2}, v{s+i-2}, v{s+i-1}')
                if i == 11: pv(n, 0)
                if i % 2 == 1 and i > 1: self.pop(F, 1)
            A(f'v_cvt_pk_bf16_f32 v{PP+7}, v{s+14}, v{s+15}')
        pv(17, 1)
        self.pop(F, 99)
        A.wait(vm='all', lg='all')

    def fallback(self):
        T = []
        K, V0, V1, Q, O, S, PP, M = XR, XR+4, XR+8, XR+12, XR+16, XR+96, XR+32, XR+40
        T += ['L_fallback:', 's_nop 7', 's_nop 7', f'v_mov_b32 v{M}, 0xff800000']
        T += [f'v_mov_b32 v{O+i}, 0' for i in range(16)]
        for ps in range(2):
            T += ['s_mov_b32 s89, 0', 's_mov_b32 s88, s90', f'L_fb_loop{ps}:']
            T += [f'buffer_load_dwordx4 {vr(K,4)}, v17, {S_WS}, s88 offen sc1']
            if ps:
                T += [f'buffer_load_dwordx4 {vr(V0,4)}, v18, {S_WS}, s88 offen offset:2048 sc1',
                      f'buffer_load_dwordx4 {vr(V1,4)}, v18, {S_WS}, s88 offen offset:3200 sc1']
            T += ['s_waitcnt vmcnt(0)', 's_cmp_eq_u32 s89, 0', f's_cbranch_scc1 L_fb_d{ps}', 's_cmp_eq_u32 s89, 8', f's_cbranch_scc1 L_fb_f{ps}',
                  f'v_mfma_f32_32x32x16_bf16 {vr(S,16)}, {vr(K,4)}, {vr(Q,4)}, 0', f's_branch L_fb_j{ps}',
                  f'L_fb_d{ps}:', f'v_mfma_f32_32x32x16_bf16 {vr(S,16)}, {vr(K,4)}, {vr(Q,4)}, {vr(WF,16)}', f's_branch L_fb_j{ps}',
                  f'L_fb_f{ps}:', f'v_mfma_f32_32x32x16_bf16 {vr(S,16)}, {vr(K,4)}, {vr(Q,4)}, {vr(WF+16,16)}',
                  f'L_fb_j{ps}:']
            if ps == 0:
                T += [f'v_max3_f32 v{M}, v{M}, v{S+2*i}, v{S+2*i+1}' for i in range(8)]
            else:
                T += [f'v_sub_f32 v{S+i}, v{S+i}, v{M}' for i in range(16)]
                T += [f'v_exp_f32 v{S+i}, v{S+i}' for i in range(16)]
                T += [f'v_cvt_pk_bf16_f32 v{PP+i}, v{S+2*i}, v{S+2*i+1}' for i in range(8)]
                T += [f'v_mfma_f32_32x32x16_bf16 {vr(O,16)}, {vr(V0,4)}, {vr(PP,4)}, {vr(O,16)}',
                      f'v_mfma_f32_32x32x16_bf16 {vr(O,16)}, {vr(V1,4)}, {vr(PP+4,4)}, {vr(O,16)}', 's_nop 7', 's_nop 7']
            T += [f's_sub_u32 s88, s88, {REC}', 's_add_u32 s89, s89, 1', 's_cmp_gt_u32 s89, s91', f's_cbranch_scc1 L_fb_x{ps}',
                  's_cmp_le_u32 s89, 8', f's_cbranch_scc1 L_fb_loop{ps}', f'L_fb_x{ps}:']
            if ps == 0:
                T += [f'v_mov_b32 v{M+1}, v{M}', f'v_permlane32_swap_b32 v{M}, v{M+1}', f'v_max_f32 v{M}, v{M}, v{M+1}']
        T += ['s_setpc_b64 s[92:93]']
        return T

    def build(self):
        A = self.A
        hdr = open('interleave_layers__linear_attn_block__sliding_block__prompt.s.ref').read().split('\n')
        hdr = [l for l in hdr if l.startswith(';') and '@launch' not in l]
        for l in hdr: A.L.append(l)
        A(f'; @launch grid=(256,1,1) block=(256,1,1) lds={LDS_BYTES}')
        A('.amdgcn_target "amdgcn-amd-amdhsa--gfx950"'); A('.text'); A(f'.globl {KN}'); A('.p2align 8'); A(f'.type {KN},@function'); A(f'{KN}:')
        self.prologue()
        for L in range(self.nl):
            if L > 0: self.pass1(L)
            W = self.layerA(L) if L % 2 == 0 else self.layerB(L)
            self.outproj(L, W)
        A(f's_or_b32 s91, {sTB}, {sJ}'); A('s_cmp_lg_u32 s91, 0'); A('s_cbranch_scc1 L_noepoch')
        A(f'v_mov_b32 v12, {sNON}'); A('v_mov_b32 v13, 0'); A('s_mov_b64 exec, 1')
        A(f'buffer_store_dword v12, v13, {S_WS}, 0 offen offset:{EPOCH} sc1')
        A('s_mov_b64 exec, -1')
        A('L_noepoch:')
        if self.debug:
            A.wait(vm='all'); self.stamp('end')
            A(f's_lshl_b32 s91, {sTB}, 4'); A(f's_add_u32 s91, s91, {sJ}'); A('s_lshl_b32 s91, s91, 8'); A(f's_add_u32 s91, s91, {hx(STAMP)}')
            A(f'v_writelane_b32 {vDBG}, {sSPIN}, 62'); A(f'v_writelane_b32 {vDBG}, {sMODE}, 63')
            A(f'buffer_store_dword {vDBG}, {vL4}, {S_WS}, s91 offen')
        A('L_end:')
        A('s_endpgm')
        for l in A.tail: A.L.append(l)
        if self.nl > 1:
            for l in self.fallback(): A.L.append(l)
        A('L_codeend:')
        A('s_endpgm')
        A('.section .rodata,"a"'); A('.p2align 6'); A(f'.amdhsa_kernel {KN}')
        for d in ['next_free_vgpr 512', 'next_free_sgpr 102', 'accum_offset 256', 'group_segment_fixed_size 0', 'kernarg_size 72',
                  'user_sgpr_count 2', 'user_sgpr_kernarg_segment_ptr 1', 'system_sgpr_workgroup_id_x 1']:
            A('.amdhsa_' + d)
        A('.end_amdhsa_kernel')
        return A.text()

if __name__ == '__main__':
    import argparse
    ap = argparse.ArgumentParser()
    ap.add_argument('-o', default='interleave_layers__linear_attn_block__sliding_block__prompt.s')
    ap.add_argument('--nl', type=int, default=4); ap.add_argument('--debug', action='store_true')
    ap.add_argument('--slow', action='store_true'); ap.add_argument('--fb', action='store_true')
    a = ap.parse_args()
    g = Gen(a.nl, a.debug, a.slow, a.fb)
    t = g.build()
    open(a.o, 'w').write(t)
    print('lines', t.count('\n'), 'nops inserted', g.A.nops)
    if a.debug: open(a.o + '.names', 'w').write('\n'.join(g.names))
```

```python
import re

REG = re.compile(r'^(-?)(abs\()?([vas])(?:(\d+)|\[(\d+):(\d+)\])\)?$')
TRANS = ('v_exp_', 'v_log_', 'v_rcp_', 'v_rsq_', 'v_sqrt_', 'v_sin_', 'v_cos_')

def regs_of(op):
    op = op.strip()
    if op == 'vcc': return {('s', 'vcc')}
    if op in ('vcc_lo', 'vcc_hi'): return {('s', 'vcc')}
    if op in ('exec', 'exec_lo', 'exec_hi'): return {('s', 'exec')}
    if op == 'm0': return {('s', 'm0')}
    m = REG.match(op)
    if not m: return set()
    k = m.group(3)
    if m.group(4) is not None: return {(k, int(m.group(4)))}
    return {(k, i) for i in range(int(m.group(5)), int(m.group(6)) + 1)}

class Ins:
    def __init__(self, text):
        self.text = text
        t = text.split(';')[0].strip()
        self.label = None; self.dir = False
        self.kind = 'other'; self.wr = set(); self.rd = set()
        self.A = self.B = self.C = set(); self.target = None; self.states = 1
        self.mn = ''
        if not t: self.kind = 'blank'; self.states = 0; return
        if t.endswith(':'): self.kind = 'label'; self.label = t[:-1]; self.states = 0; return
        if t.startswith('.'): self.kind = 'dir'; self.states = 0; return
        parts = t.split(None, 1)
        mn = self.mn = parts[0]
        rest = parts[1] if len(parts) > 1 else ''
        ops = [o.strip() for o in re.split(r',(?![^\[\(]*[\]\)])', rest)] if rest else []
        mods = ''
        if ops:
            last = ops[-1].split(None, 1)
            ops[-1] = last[0]
            mods = last[1] if len(last) > 1 else ''
        self.ops = ops; self.mods = mods
        R = [regs_of(o) for o in ops]
        U = lambda l: set().union(*l) if l else set()
        if mn == 's_nop': self.kind = 'nop'; self.states = int(ops[0], 0) + 1
        elif mn.startswith('v_mfma'):
            self.kind = 'mfma'; self.wr = R[0]; self.A, self.B, self.C = R[1], R[2], R[3]; self.rd = U(R[1:4])
            self.passes = 8 if '32x32' in mn else 4
        elif mn.startswith('v_'):
            self.kind = 'valu'
            self.trans = mn.startswith(TRANS)
            self.dot = mn.startswith('v_dot')
            if mn.startswith('v_permlane') :
                self.wr = R[0] | R[1]; self.rd = R[0] | R[1]
            elif re.match(r'v_(add|sub|subrev|addc|subb|subbrev)_co_', mn):
                self.wr = R[0] | R[1]; self.rd = U(R[2:])
            else:
                self.wr = R[0]; self.rd = U(R[1:])
                if mn.startswith(('v_fmac', 'v_dot2c', 'v_writelane', 'v_pk_fmac')): self.rd = self.rd | R[0]
                if mn.startswith('v_cmpx'): self.wr = self.wr | {('s', 'exec')}
            self.dpp = ('quad_perm' in mods or 'row_' in mods or 'dpp' in mn)
        elif mn.startswith('ds_'):
            self.kind = 'ds'
            if mn.startswith(('ds_read', 'ds_bpermute', 'ds_permute', 'ds_swizzle')): self.wr = R[0]; self.rd = U(R[1:])
            else: self.rd = U(R)
        elif mn.startswith(('buffer_', 'global_')):
            self.kind = 'vmem'
            self.lds = bool(re.search(r'\blds\b', mods))
            if '_load' in mn and not self.lds: self.wr = R[0]; self.rd = U(R[1:])
            else: self.rd = U(R)
            self.wide = None
            if '_store_dwordx3' in mn or '_store_dwordx4' in mn:
                self.wide = R[0] if mn.startswith('buffer_') else R[1]
        elif mn.startswith('s_'):
            self.kind = 'salu'
            if mn.startswith(('s_cbranch', 's_branch')): self.kind = 'branch'; self.target = ops[0]
            elif mn.startswith(('s_cmp', 's_bitcmp', 's_waitcnt', 's_barrier', 's_sleep', 's_setprio', 's_endpgm', 's_setpc')): self.rd = U(R)
            else: self.wr = R[0] if R else set(); self.rd = U(R[1:])

def need(p, c):
    n = 0
    vw = {r for r in p.wr if r[0] in 'va'}
    sw = {r for r in p.wr if r[0] == 's'}
    if p.kind == 'valu':
        if c.kind == 'mfma' and vw & c.rd: n = max(n, 3 if p.dot else 2)
        if c.kind == 'valu':
            if p.trans and not c.trans and vw & c.rd: n = max(n, 1)
            if p.trans and c.trans and vw & c.rd: n = max(n, 1)
            if c.mn.startswith('v_permlane') and vw & c.rd: n = max(n, 2)
            if c.mn.startswith(('v_readlane', 'v_readfirstlane')) and vw & c.rd: n = max(n, 1)
            if c.dpp and vw & c.rd: n = max(n, 2)
            if sw & c.rd:
                n = max(n, 4 if c.mn.startswith(('v_readlane', 'v_writelane')) else 2)
            if ('s', 'exec') in sw: n = max(n, 5)
            if p.dot and vw & (c.rd | c.wr) and not (c.mn == p.mn and not (vw & (regs_of(c.ops[1]) | regs_of(c.ops[2])))): n = max(n, 3)
        if c.kind in ('vmem', 'ds') and p.dot and vw & c.rd: n = max(n, 3)
        if c.kind in ('vmem', 'ds') and p.trans and vw & c.rd: n = max(n, 1)
        if c.kind == 'vmem' and sw & c.rd: n = max(n, 5)
        if c.kind == 'mfma' and ('s', 'exec') in sw: n = max(n, 4)
        if c.kind in ('salu', 'branch') and sw & c.rd: n = max(n, 1)
    if p.kind == 'mfma':
        big = p.passes == 8
        if c.kind == 'mfma':
            if p.wr & (c.A | c.B): n = max(n, 12 if big else 8)
            if p.wr & c.C and not (p.wr == c.C and p.passes == c.passes): n = max(n, 10 if big else 6)
            if p.wr & c.wr and not (p.wr == c.C and p.passes == c.passes): n = max(n, 10 if big else 6)
        elif c.kind in ('valu', 'vmem', 'ds'):
            if p.wr & (c.rd | c.wr): n = max(n, 12 if big else 8)
            if c.kind == 'valu' and p.C & c.wr: n = max(n, 7 if big else 3)
            if c.kind in ('vmem', 'ds') and p.C & c.wr: n = max(n, 7 if big else 3)
    if p.kind == 'vmem' and getattr(p, 'wide', None):
        if p.wide & c.wr: n = max(n, 2)
    if p.kind == 'salu' and ('s', 'm0') in p.wr:
        if c.kind == 'vmem' and c.lds: n = max(n, 1)
        if c.kind == 'valu' and ('s', 'm0') in c.rd: n = max(n, 1)
    return n

WIN = 14
def fix_hazards(lines):
    ins = [Ins(l) for l in lines]
    changed = True
    nins = 0
    while changed:
        changed = False
        labels = {x.label: i for i, x in enumerate(ins) if x.kind == 'label'}
        preds = {}
        for i, x in enumerate(ins):
            if x.kind == 'branch' and x.target in labels: preds.setdefault(labels[x.target], []).append(i)
        i = 0
        while i < len(ins):
            c = ins[i]
            if c.states == 0 or c.kind == 'nop': i += 1; continue
            worst = 0
            stack = [(i - 1, 0)]
            seen = set()
            while stack:
                k, d = stack.pop()
                while k >= 0 and d < WIN:
                    if (k, d) in seen: break
                    seen.add((k, d))
                    p = ins[k]
                    if p.kind == 'label':
                        for b in preds.get(k, []): stack.append((b, d))
                        kk = k - 1
                        while kk >= 0 and ins[kk].states == 0 and ins[kk].kind != 'label': kk -= 1
                        if kk >= 0 and ins[kk].mn in ('s_branch', 's_endpgm', 's_setpc_b64'): break
                        k -= 1; continue
                    if p.states:
                        r = need(p, c) - d
                        if r > worst: worst = r
                        d += p.states
                    k -= 1
            if worst > 0:
                ins.insert(i, Ins(f's_nop {worst-1}'))
                nins += 1
                changed = True
                break_out = True
                labels = {x.label: ii for ii, x in enumerate(ins) if x.kind == 'label'}
                preds = {}
                for ii, x in enumerate(ins):
                    if x.kind == 'branch' and x.target in labels: preds.setdefault(labels[x.target], []).append(ii)
                i += 1
            i += 1
    return [x.text for x in ins], nins

class Asm:
    def __init__(self):
        self.L = []
        self.vmops = []; self.lgops = []
        self.vm_done = 0; self.lg_done = 0
        self.uid = 0
        self.stack = [0]; self.saved = []; self.nreg = 0
        self.tail = []
    def __call__(self, s):
        for line in s.split('\n'):
            line = line.strip()
            if not line: continue
            self.L.append(line)
            mn = line.split()[0]
            if mn.startswith(('buffer_', 'global_')): self.vmops.append(self.stack[-1])
            elif mn.startswith('ds_'): self.lgops.append(self.stack[-1])
        return (len(self.vmops), len(self.lgops))
    def tok(self): return (len(self.vmops), len(self.lgops))
    def lab(self, base):
        self.uid += 1
        return f'L_{base}_{self.uid}'
    def cond_begin(self):
        self.nreg += 1; self.stack.append(self.nreg); self.saved.append((self.vm_done, self.lg_done))
    def cond_end(self):
        self.stack.pop(); self.vm_done, self.lg_done = self.saved.pop()
    def _cnt(self, ops, t):
        return sum(1 for r in ops[t:] if r in self.stack)
    def wait(self, vm=None, lg=None):
        parts = []
        if vm is not None:
            t = len(self.vmops) if vm == 'all' else vm[0]
            if vm == 'all' or t > self.vm_done:
                n = self._cnt(self.vmops, t)
                parts.append(f'vmcnt({min(n, 63)})')
                self.vm_done = max(self.vm_done, t)
        if lg is not None:
            t = len(self.lgops) if lg == 'all' else lg[1]
            if lg == 'all' or t > self.lg_done:
                n = self._cnt(self.lgops, t)
                parts.append(f'lgkmcnt({min(n, 15)})')
                self.lg_done = max(self.lg_done, t)
        if parts: self.L.append('s_waitcnt ' + ' '.join(parts))
    def text(self):
        out, n = fix_hazards(self.L)
        self.nops = n
        return '\n'.join(('' if (l.endswith(':') or l.startswith(('.', ';'))) else '    ') + l for l in out) + '\n'

import subprocess, os, tempfile
def sizes_of(text):
    d = tempfile.mkdtemp()
    open(d + '/a.s', 'w').write(text)
    subprocess.run(['clang', '-x', 'assembler', '-target', 'amdgcn-amd-amdhsa', '-mcpu=gfx950', '-c', d + '/a.s', '-o', d + '/a.o'], check=True)
    out = subprocess.run(['llvm-objdump', '-d', '--mcpu=gfx950', d + '/a.o'], capture_output=True, text=True).stdout
    return [len(l.split('//')[1].split(':')[1].split()) * 4 for l in out.split('\n') if '//' in l]

E64 = ('v_mov_b32', 'v_add_f32', 'v_mul_f32', 'v_max_f32', 'v_sub_f32', 'v_exp_f32', 'v_rcp_f32', 'v_add_u32', 'v_and_b32', 'v_or_b32',
       'v_xor_b32', 'v_lshlrev_b32', 'v_lshrrev_b32', 'v_cmp_ne_u32', 'v_rsq_f32')
def align_runs(text, start_label, minrun=5, back=12):
    lines = text.split('\n')
    ins = [Ins(l.strip()) for l in lines]
    idx = [i for i, x in enumerate(ins) if x.kind not in ('blank', 'label', 'dir')]
    sz = sizes_of(text)[:len(idx)]
    first = next(k for k, i in enumerate(idx) if i > next(n for n, x in enumerate(ins) if x.label == start_label))
    addr = sum(sz[:first]); k = first; fixed = missed = 0; last_run_end = first
    fast = lambda k: sz[k] == 8 and ins[idx[k]].kind in ('valu', 'ds', 'salu') and not getattr(ins[idx[k]], 'trans', False)
    while k < len(idx):
        r = k
        while r < len(idx) and fast(r): r += 1
        if r - k >= minrun:
            if addr % 8:
                done = False
                for b in range(k - 1, max(last_run_end, k - back) - 1, -1):
                    x = ins[idx[b]]
                    if sz[b] != 4: continue
                    if x.kind == 'nop' and x.states >= 2:
                        lines[idx[b]] = f'    s_nop 0\n    s_nop {x.states - 2}'; done = True
                    elif x.mn in E64:
                        lines[idx[b]] = lines[idx[b]].replace(x.mn, x.mn + '_e64', 1); done = True
                    if done: break
                if not done and r - k >= 10:
                    lines[idx[k]] = '    s_nop 0\n' + lines[idx[k]]; done = True
                if done: addr += 4; fixed += 1
                else: missed += 1
            last_run_end = r
        if r == k: r = k + 1
        addr += sum(sz[k:r]); k = r
    return '\n'.join(lines), fixed, missed
```

```python
import sys, struct
from asmlib import Asm, align_runs

KN = 'interleave_layers__linear_attn_block__sliding_block__prompt_kernel'

EPOCH = 0
ST0   = 0x50000
XF    = 0x2000
OF    = 0x4000
KVF   = 0x10000; KVF_L = 0x20000
STAT  = 0x80000
PART  = 0x100000; PART_L = 0xC0000
XB    = 0x400000
OB    = 0x600000
KVB   = 0x800000; KVB_L = 0x500000
REC   = 4352
SLOW  = 0x2000000
STAMP = 0xF000000
WS_BYTES = 0x10000000
WK, WV, WQ, WO, MISC = 0, 32768, 65536, 98304, 131072
QL  = MISC + 4 * REC
CST = QL + 8192
RSB = CST + 6144
TOT = MISC + 12288
ZOF = TOT + 2048
LDS_BYTES = 163840
S_X0, S_WA, S_WB, S_OA, S_OB, S_WS, S_OUT = [f's[{4*i+4}:{4*i+7}]' for i in range(7)]
sW, sC, sJ, sTB, sNON, sEXP, sXO, sOO, sST, sXF, sOF, sROT, sSLOW, sXCC = [f's{64+i}' for i in range(14)]
T = [f's{80+i}' for i in range(16)]
sCH = ['s0', 's1', 's2', 's3']
S_XB = S_X0
sXW, sSW, sXFW, sOFR = 's80', 's81', 's82', 's83'
sOR = sROT
sMODE = sSLOW
sHALF = 's[96:97]'; sSPIN = 's98'; sSTI = 's99'
SPIN_LIMIT = 400000
vLANE, vL16, vTR0, vTR1, vBK0, vBK1, vF4, vDBG, vRSTD, vL128, vRSR, vMISC = [f'v{i}' for i in range(12)]
vBKO = 'v19'
MU = 20; QF = 24; WF = 32; RES = 64; AK = 80; AV = 96; AQ = 112; XR = 128

def vr(a, n=1): return f'v{a}' if n == 1 else f'v[{a}:{a+n-1}]'
def ar(a, n=1): return f'a{a}' if n == 1 else f'a[{a}:{a+n-1}]'
def f2u(x): return struct.unpack('<I', struct.pack('<f', x))[0]
def hx(x): return f'0x{x & 0xffffffff:x}'
LOG2E = 1.4426950408889634; LN2 = 0.6931471805599453
ONES = 0x3f803f80

KVA, QA, QB, WOA, KVB_A = 0, 64, 96, 128, 192
WOB = KVA

class Gen:
    def __init__(self, nlayers=4, debug=False, force_slow=False, force_fb=False, probe=None, **kw):
        self.probe = probe
        self.A = Asm(); self.nl = nlayers; self.debug = debug
        self.force_slow = force_slow; self.force_fb = force_fb
        self.names = []; self.light = False
        self.tk = {}; self.B = []; self.open = set()
        self.p = dict(depth=8, stat_at=3, flag_at=21, poll_n=2)
        self.p.update(kw)

    def stamp(self, name, again=0):
        if self.probe == name:
            self.A('s_memrealtime s[100:101]'); self.A.wait(lg='all'); self.A('s_sub_u32 s79, s100, s99')
        if not self.debug: return
        if self.p.get('only') and name not in self.p['only'] and name not in ('start', 'end', 'end2'): return
        if name[2:3] == '.' and int(name[1]) not in self.p.get('fine', ()): return
        if self.p.get('fine') and name[0] == 'L' and int(name[1]) not in self.p['fine'] and 'xpoll' not in name: return
        A = self.A
        if not again: self.names.append(name)
        k = self.names.index(name)
        op = 's_memtime' if self.debug == 2 else 's_memrealtime'
        r = [100, 78]
        if self.light:
            A(f'v_writelane_b32 {vDBG}, s{r[(k-1)&1]}, {k-1}')
            A(f'{op} s[{r[k&1]}:{r[k&1]+1}]')
        else:
            A(f'{op} s[100:101]'); A('s_waitcnt lgkmcnt(0)')
            A(f'v_writelane_b32 {vDBG}, s100, {k}')
            if name == 'start': A('s_mov_b32 s78, s100'); self.light = True

    def mfma(self, d, a, b, c):
        c = '0' if c is None else vr(c, 16)
        self.A(f'v_mfma_f32_32x32x16_bf16 {vr(d,16)}, {vr(a,4)}, {vr(b,4)}, {c}')

    def csum(self, d, b, first, acc=False):
        self.A(f'v_mfma_f32_16x16x32_bf16 {vr(d,4)}, {vr(QF,4)}, {ar(b,4) if acc else vr(b,4)}, {"0" if first else vr(d,4)}')
    def selector(self):
        m = sum(1 << l for l in range(32) if ((l >> 4) & 1) == ((l >> 2) & 1))
        return [f's_mov_b32 s92, {hx(m)}\ns_mov_b32 s93, s92\nv_mov_b32 v{QF+1}, {hx(ONES)}\nv_cndmask_b32_e64 v{QF}, 0, v{QF+1}, s[92:93]'] + \
               [f'v_mov_b32 v{QF+i}, v{QF}' for i in range(1, 4)]

    def tr(self, dst, addr, off, d=256, acc=False):
        r = ar if acc else vr
        self.A(f'ds_read_b64_tr_b16 {r(dst,2)}, {addr} offset:{off}')
        return self.A(f'ds_read_b64_tr_b16 {r(dst+2,2)}, {addr} offset:{off+d}')
    def wrd(self, L, dst, addr, off):
        if L < 2: return self.tr(dst, addr, off)
        return self.A(f'ds_read_b128 {vr(dst,4)}, {addr} offset:{off}')

    def pop(self, Q, n):
        for _ in range(n):
            if not Q: return
            x = Q.pop(0)
            if callable(x): x()
            else: self.A(x)

    def popb(self, Q, credit):
        while Q and credit > 0:
            n = len(self.A.L); self.pop(Q, 1); credit -= len(self.A.L) - n
        return min(credit, 0)

    def moded(self, lines, slow=None, through=False):
        A = self.A
        if through:
            for l in lines: t = A(l + ' sc1')
            return t
        ls, lb = A.lab('slow'), A.lab('back')
        A(f's_cmp_lg_u32 {sMODE}, 0'); A(f's_cbranch_scc1 {ls}')
        for l in lines: t = A(l)
        A(f'{lb}:')
        A.tail += [f'{ls}:'] + [l + ' sc1' if l.startswith('buffer_') else l for l in (slow or lines)] + [f's_branch {lb}']
        return t

    def flag(self, tok, stores):
        A = self.A
        A('s_mov_b64 exec, 1')
        n = len(A.L); A.wait(vm=tok); w = A.L[n:]; del A.L[n:]
        self.moded(w + stores, ['s_waitcnt vmcnt(0)'] + stores)
        A('s_mov_b64 exec, -1')

    def probe_(self, soff, vtmp): return self.A(f'buffer_load_dword v{vtmp}, {vF4}, {S_WS}, {soff} offen sc1')
    def spin(self, soff, vtmp):
        A = self.A; l = A.lab('poll')
        A(f'{l}:')
        A(f's_add_u32 {sSPIN}, {sSPIN}, 1'); A(f's_cmp_lt_u32 {sSPIN}, {SPIN_LIMIT}'); A('s_cselect_b64 s[94:95], -1, 0')
        A.wait(vm='all')
        A(f'v_cmp_ne_u32 vcc, {sEXP}, v{vtmp}' if {12: 'opoll', 16: 'xpoll'}[vtmp] not in self.p.get('x', '') else f'v_cmp_ne_u32 vcc, v{vtmp}, v{vtmp}')
        self.probe_(soff, vtmp)
        A('s_and_b64 vcc, vcc, s[94:95]')
        A(f's_cbranch_scc1 {l}')

    def retry(self, check, reload, valid=None, inline=False):
        A = self.A; lo, lb = A.lab('ro'), A.lab('rb')
        if inline:
            A(f'{lo}:')
            for l in check: A(l)
            if valid: A(f's_and_b64 vcc, vcc, {valid}')
            A(f's_cbranch_vccz {lb}')
            A.L += reload + [f's_add_u32 {sSPIN}, {sSPIN}, 1', f's_cmp_lt_u32 {sSPIN}, {SPIN_LIMIT}', 's_waitcnt vmcnt(0)', f's_cbranch_scc1 {lo}']
            A(f'{lb}:')
            return
        for l in check: A(l)
        if valid: A(f's_and_b64 vcc, vcc, {valid}')
        A(f's_cbranch_vccnz {lo}')
        A(f'{lb}:')
        A.tail += [f'{lo}:'] + reload + [f's_add_u32 {sSPIN}, {sSPIN}, 1', f's_cmp_lt_u32 {sSPIN}, {SPIN_LIMIT}',
                   f's_cselect_b64 s[94:95], {valid if valid else -1}, 0', 's_waitcnt vmcnt(0)'] + check + \
                  ['s_and_b64 vcc, vcc, s[94:95]', f's_cbranch_scc1 {lo}', f's_branch {lb}']

    def epoch(self):
        l = self.A.lab('ep')
        return (f's_or_b32 s91, {sTB}, {sJ}\ns_cbranch_scc1 {l}\nv_mov_b32 v15, {sNON}\n'
                f'buffer_store_dword v15, {vF4}, {S_WS}, 0 offen offset:{EPOCH} sc1\n{l}:')

    def code_touch(self, t, dst):
        l = self.A.lab('pc')
        return (f's_getpc_b64 s[92:93]\n{l}:\ns_sub_u32 s92, s92, {l}-L_pc\ns_subb_u32 s93, s93, 0\n'
                f's_and_b32 s91, {sC}, 1\ns_lshl4_add_u32 s91, s91, {sJ}\ns_lshl2_add_u32 s91, s91, {sW}\ns_lshl_b32 s91, s91, 9\n'
                f'v_lshl_add_u32 v{t}, {vLANE}, 3, s91\nglobal_load_dword {dst}, v{t}, s[92:93]')

    def barrier(self):
        self.A.wait(lg='all'); self.A('s_barrier')

    def bk_off(self, i): return 8192*(i >> 1) + 1024*(i & 1)
    def q_write(self, abase): return [f'ds_write_b128 {vBK1}, {ar(abase+4*i,4)} offset:{WQ-65536+self.bk_off(i)}' for i in range(8)]
    def kv_off(self, n): return (WK if n < 8 else WV) + self.bk_off(n & 7)
    def kv_write(self, abase): return [f'ds_write_b128 {vBK0}, {ar(abase+4*n,4)} offset:{self.kv_off(n)}' for n in range(16)]
    def w_dma(self, srd, g, col, reg):
        return [f's_lshl_b32 s92, {sW}, 11\ns_mul_i32 s93, {sCH[g]}, 48\ns_add_u32 m0, s92, {reg+8192*g+1024*i}\n'
                f's_add_u32 s93, s93, {col+i*16*3072}\nbuffer_load_dwordx4 v18, {srd}, s93 offen lds' for i in range(2)]
    def touch(self, srd, nbytes, part=None, voff=vL128, off=0):
        out = []; n = nbytes // 128 if part is None else part
        for k in range(0, n, 64):
            m = min(64, n - k)
            t = (f's_and_b32 s93, {sC}, 1\ns_lshl4_add_u32 s93, s93, {sJ}\ns_lshl2_add_u32 s93, s93, {sW}\ns_mul_i32 s93, s93, {nbytes}\n'
                 + (f's_add_u32 s93, s93, {128*k+off}\n' if k or off else ''))
            if m < 64: t += f's_mov_b64 exec, {hex((1 << m) - 1)}\n'
            t += f'buffer_load_dword a255, {voff}, {srd}, s93 offen'
            if m < 64: t += '\ns_mov_b64 exec, -1'
            out.append(t)
        return out
    def wo_voff(self, d, t):
        return (f'v_lshrrev_b32 v{d}, 3, {vLANE}\nv_and_b32 v{t}, 6, v{d}\nv_xor_b32 v{t}, v{t}, {vLANE}\nv_and_b32 v{t}, 7, v{t}\nv_lshlrev_b32 v{t}, 4, v{t}\n'
                f'v_lshl_add_u32 v{t}, v{d}, 10, v{t}\nv_lshrrev_b32 v{d}, 5, {vLANE}\nv_lshl_add_u32 v{d}, v{d}, 12, v{t}\n'
                f's_lshl_b32 s92, {sW}, 15\ns_lshr_b32 s93, {sJ}, 1\ns_lshl_b32 s93, s93, 7\ns_add_u32 s92, s92, s93\nv_add_u32 v{d}, s92, v{d}')
    def wo_off(self, n): return (WO if n < 8 else WQ) + 16384*((n >> 2) & 1) + 1024*(n & 3)
    def wo_src(self, n): return 4096*(n & 1) + 16384*((n >> 1) & 1)
    def wo_load(self, srd, voff, abase, ns):
        return [f's_lshl_b32 s93, {sCH[n>>2]}, 4\ns_add_u32 s93, s93, {self.wo_src(n)}\n'
                f'buffer_load_dwordx4 {ar(abase+4*n,4)}, {voff}, {srd}, s93 offen' for n in ns]
    def wo_dma(self, srd, voff, ns):
        return [f's_lshl_b32 s92, {sW}, 12\ns_lshl_b32 s93, {sCH[n>>2]}, 4\ns_add_u32 m0, s92, {self.wo_off(n)}\ns_add_u32 s93, s93, {self.wo_src(n)}\n'
                f'buffer_load_dwordx4 {voff}, {srd}, s93 offen lds' for n in ns]
    def wo_dma_run(self, srd, voff, st):
        out = []
        for n in range(16):
            if n & 3: pre = f's_addk_i32 m0, 1024\ns_addk_i32 {st}, {self.wo_src(n) - self.wo_src(n-1)}\n'
            elif n == 0: pre = f's_lshl_b32 s92, {sW}, 12\ns_add_u32 m0, s92, {self.wo_off(0)}\ns_lshl_b32 {st}, {sCH[0]}, 4\n'
            else: pre = f's_add_u32 m0, m0, {hx(self.wo_off(n) - self.wo_off(n-1))}\ns_lshl_b32 {st}, {sCH[n>>2]}, 4\n'
            out.append(pre + f'buffer_load_dwordx4 {voff}, {srd}, {st} offen lds')
        return out
    def wo_write(self, abase, half):
        return [f'ds_write_b128 {vBKO}, {ar(abase+4*n,4)} offset:{self.wo_off(n)-65536}' for n in range(8*half, 8*half+8)]
    def wo_save(self, abase):
        out = [f's_lshl_b32 s91, {sW}, 12\n' + '\n'.join(f'v_add_u32 v{MU+f}, s91, v{MU+f}' for f in range(4))]
        for n in range(16):
            o = self.wo_off(n & 12) - 65536; a = abase + 4*n
            out.append(f'ds_read_b64_tr_b16 {ar(a,2)}, v{MU+(n&3)} offset:{o}\nds_read_b64_tr_b16 {ar(a+2,2)}, v{MU+(n&3)} offset:{o+1024}')
        return out
    def mark(self, name): return [lambda: self.tk.__setitem__(name, self.A.tok())]
    def bpop(self, n, upto=None):
        B = self.B
        while B and (callable(B[0]) or (isinstance(B[0], tuple) and B[0][0] in self.open) or (isinstance(B[0], str) and (n > 0 or (upto and upto not in self.tk)))):
            x = B.pop(0)
            if callable(x): x()
            elif isinstance(x, str): self.A(x); n -= 1
        if upto: assert upto in self.tk, upto

    def stats_finish(self, t, isA):
        u = t + 1
        Q = [f'v_mov_b32 v{u}, v{t}',
             f'v_permlane32_swap_b32 v{t}, v{u}',
             f'v_mul_f32 v{t}, {hx(f2u(-1.0/512))}, v{t}',
             f'v_mul_f32 v{u}, {hx(f2u(1.0/512))}, v{u}',
             f'v_fma_f32 v{u}, -v{t}, v{t}, v{u}',
             f'v_max_f32 v{u}, 0, v{u}',
             f'v_add_f32 v{u}, {hx(f2u(1e-5))}, v{u}',
             f'v_rsq_f32 {vRSTD}, v{u}',
             f'v_cvt_pk_bf16_f32 v{u}, v{t}, v{t}']
        if isA: Q += [f'v_mul_f32 {vRSTD}, {hx(f2u(LOG2E))}, {vRSTD}']
        Q += [f'v_lshlrev_b32 v{u}, 16, v{u}',
              f's_lshl_b32 s91, {sW}, 7\ns_add_u32 s91, s91, {RSB}\nv_add_u32 v{MU}, s91, {vF4}',
              f'ds_write_b32 v{MU}, {vRSTD}',
              f'v_sub_f32 v{u}, v{t}, v{u}',
              f'v_cvt_pk_bf16_f32 v{MU}, v{t}, v{u}',
              f'v_cvt_pk_bf16_f32 v{MU+1}, v{t}, v{u}',
              f'v_cvt_pk_bf16_f32 v{MU+2}, v{t}, v{u}',
              f'v_cvt_pk_bf16_f32 v{MU+3}, v{t}, v{u}']
        Q += [f'ds_read_b128 {vr(AQ+4*i,4)}, {vRSR} offset:{32*i}' for i in range(4)]
        return Q

    def cs_write(self, src, t, addr, off):
        return [f'v_cvt_pk_bf16_f32 v{t}, v{src}, v{src}',
                f'v_lshlrev_b32 v{t+1}, 16, v{t}',
                f'v_sub_f32 v{t+1}, v{src}, v{t+1}',
                f'v_cvt_pk_bf16_f32 v{t+1}, v{t+1}, v{t+1}',
                f'ds_write_b64 {addr}, {vr(t,2)} offset:{off}']
    def cs_addr(self, dst):
        return ['\n'.join([f's_lshr_b32 s92, {sW}, 1', f's_lshl_b32 s92, s92, 9', f's_and_b32 s93, {sW}, 1', f's_lshl_b32 s93, s93, 3',
                f's_add_u32 s92, s92, s93', f's_add_u32 s92, s92, {CST}',
                f'v_and_b32 v{dst}, 31, {vLANE}', f'v_lshl_add_u32 v{dst}, v{dst}, 4, s92'])]

    def prologue(self):
        A = self.A
        vWQ = 'v18'
        XA = AQ + 8
        XRD = AQ
        A('s_cmpk_ge_u32 s2, 0x100'); A('s_cbranch_scc1 L_end')
        if self.probe or self.debug: A('s_memtime s[100:101]' if self.debug == 2 else 's_memrealtime s[100:101]')
        A('s_load_dwordx2 s[4:5], s[0:1], 0')
        A('s_load_dwordx2 s[8:9], s[0:1], 8')
        A('s_getpc_b64 s[96:97]'); A('L_pc:')
        A('s_lshr_b32 s3, s2, 3'); A('s_lshl_b32 s98, s3, 11')
        A(f'v_readfirstlane_b32 {sW}, v0')
        A('v_lshl_add_u32 v15, v0, 3, s98')
        A('global_load_dword v254, v15, s[96:97]')
        A('v_and_b32 v0, 63, v0')
        A(f's_lshr_b32 {sW}, {sW}, 6')
        A(f's_and_b32 {sC}, s2, 7'); A(f's_lshr_b32 {sROT}, s3, 4'); A(f's_lshl1_add_u32 {sC}, {sC}, {sROT}')
        A(f's_and_b32 {sJ}, s3, 15'); A(f's_lshl2_add_u32 {sTB}, {sC}, {sW}')
        A('s_and_b32 s3, s3, 1'); A(f's_lshl1_add_u32 {sROT}, {sROT}, s3')
        A(f'v_lshlrev_b32 {vL16}, 4, {vLANE}')
        A(f's_lshl4_add_u32 s36, {sTB}, {sJ}'); A('s_lshl_b32 s36, s36, 11')
        t0 = self.p.get('t0', 'real')
        if t0 == 'real':
            A(f'v_lshrrev_b32 v12, 2, {vLANE}'); A(f'v_and_b32 v13, 3, {vLANE}')
            A(f'v_mul_u32_u24 {vWQ}, 3072, v12'); A(f'v_lshl_add_u32 {vWQ}, v13, 4, {vWQ}')
            A(f's_lshl2_add_u32 s82, {sROT}, {sW}'); A('s_mulk_i32 s82, 1536'); A(f's_add_u32 s82, s82, {sJ}'); A('s_addk_i32 s82, 16'); A('s_lshl_b32 s82, s82, 6')
            A(f's_lshl_b32 m0, {sW}, 11')
        else:
            A(f'v_lshlrev_b32 {vL128}, 7, {vLANE}')
            A('s_lshr_b32 s82, s2, 3'); A(f's_lshl2_add_u32 s82, s82, {sW}'); A('s_mulk_i32 s82, 12288')
            if t0 == 'kv': A(f'v_lshrrev_b32 v12, 4, {vLANE}'); A(f'v_lshl_add_u32 v12, v12, 10, {vL128}')
        A('s_lshl_b32 s6, 1, 21'); A('s_mov_b32 s7, 0x20000'); A('s_lshl_b32 s10, 3, 19'); A('s_mov_b32 s11, s7')
        A('s_waitcnt lgkmcnt(0)')
        ntx = ' nt' if self.p.get('nt', 0) & 1 else ''
        A(f'buffer_load_dwordx4 {vr(AK,4)}, {vL16}, {S_X0}, s36 offen{ntx}')
        trow = A(f'buffer_load_dwordx4 {vr(AK+4,4)}, {vL16}, {S_X0}, s36 offen offset:1024{ntx}')
        if t0 == 'real':
            A(f'buffer_load_dwordx4 {vWQ}, {S_WA}, s82 offen lds')
            A('s_addk_i32 m0, 31744')
            A(f'buffer_load_dwordx4 {vWQ}, {S_WA}, s82 offen offset:1024 lds')
        elif t0 == 'kv':
            if self.p.get('split0'): A('s_mov_b32 exec_hi, 0')
            A(f'buffer_load_dword a255, v12, {S_WA}, s82 offen offset:1024')
            if self.p.get('split0'): A('s_mov_b32 exec_hi, -1'); A(f'v_mov_b32 v{AQ+14}, v12')
        else:
            A(f'buffer_load_dword a255, {vL128}, {S_WA}, s82 offen')
            A('s_addk_i32 s82, 8192'); A('s_mov_b32 exec_hi, 0')
            A(f'buffer_load_dword a255, {vL128}, {S_WA}, s82 offen')
            A('s_mov_b32 exec_hi, -1')
        A('L_first:')
        if self.probe: A('s_mov_b32 s99, s100')
        if self.debug:
            self.names.append('first'); A(f'v_mov_b32 {vDBG}, 0'); A(f'v_writelane_b32 {vDBG}, s100, 0'); self.stamp('w0iss')
        A('s_load_dwordx2 s[24:25], s[0:1], 64')
        A('s_load_dwordx2 s[16:17], s[0:1], 16'); A('s_load_dwordx2 s[12:13], s[0:1], 32')
        A('s_load_dwordx2 s[20:21], s[0:1], 40'); A('s_load_dwordx2 s[28:29], s[0:1], 48')
        A(f's_mul_i32 s34, {sW}, {32*3072}'); A(f's_lshl_b32 s35, {sJ}, 6'); A('s_add_u32 s34, s34, s35')
        if t0 == 'real': A(f'v_lshlrev_b32 {vL128}, 7, {vLANE}')
        else:
            A(f'v_lshrrev_b32 v12, 2, {vLANE}'); A(f'v_and_b32 v13, 3, {vLANE}')
            A(f'v_mul_u32_u24 {vWQ}, 3072, v12'); A(f'v_lshl_add_u32 {vWQ}, v13, 4, {vWQ}')
        A(f'v_add_u32 {vWQ}, s34, {vWQ}')
        A(f'v_lshrrev_b32 v12, 3, {vLANE}'); A(f'v_lshl_add_u32 v{AQ+13}, v12, 11, {vL128}')
        A(f'v_lshrrev_b32 v12, 4, {vLANE}'); A(f'v_and_b32 v13, 15, {vLANE}'); A('v_xor_b32 v13, v13, v12'); A('v_lshlrev_b32 v13, 4, v13')
        A(f'v_lshl_add_u32 v{XA}, v12, 10, v13')
        A(f's_lshl_b32 {sXO}, {sTB}, 15'); A(f'v_add_u32 v{XA}, {sXO}, v{XA}')
        for i in range(1, 4): A(f'v_xor_b32 v{XA+i}, {64*i}, v{XA}')
        A(f's_lshl_b32 s88, {sW}, 11')
        A(f's_lshl_b32 s89, {sW}, 13')
        for b, n in ((12, 0x180000), (16, 0x80000), (20, 0x80000), (24, WS_BYTES), (28, 0x200000)):
            A(f's_mov_b32 s{b+2}, {hx(n)}'); A(f's_mov_b32 s{b+3}, s7')
        A('s_waitcnt lgkmcnt(0)')
        A(f's_load_dword {sNON}, s[24:25], {EPOCH}')
        for g in range(4):
            A(f's_add_u32 {sCH[g]}, {sROT}, {g}'); A(f's_and_b32 {sCH[g]}, {sCH[g]}, 3'); A(f's_lshl_b32 {sCH[g]}, {sCH[g]}, 13')
        SLOT = [WO, WQ, MISC, WO]
        def xdma(g):
            Q = []
            for i in range(8):
                Q.append(f's_lshr_b32 s93, {sCH[g]}, 5\ns_add_u32 m0, s89, {SLOT[g]+1024*i}\n'
                         f's_add_u32 s93, s93, {4096*i}\nbuffer_load_dwordx4 v{XA+(i&3)}, {S_X0}, s93 offen lds')
            return Q
        kvd = lambda srd, g: self.w_dma(srd, g, 1024, WK) + self.w_dma(srd, g, 2048, WV)
        P = self.p
        B = self.B
        w0 = kvd(S_WA, 0)
        if t0 == 'real': w0 = [w0[1], w0[3]]
        PT = [f's_lshl_b32 s91, {sJ}, 11\ns_lshl_b32 s92, {sTB}, 15\ns_add_u32 s92, s91, s92\ns_add_u32 s91, s92, {OB}\ns_mov_b64 exec, 0xffff\n'
              + ('' if P.get('fs', 0) & 1 else f'buffer_load_dword a255, {vL128}, {S_WS}, s91 offen\n')
              + ('' if P.get('fs', 0) & 2 else f'buffer_load_dword a255, {vL128}, {S_OUT}, s92 offen\n') +
              f's_lshl_b32 s91, {sJ}, 7\ns_add_u32 s91, s91, {sST}\ns_mov_b64 exec, 1\nbuffer_load_dword a255, {vL128}, {S_WS}, s91 offen\n'
              f'buffer_load_dword a255, {vL128}, {S_WS}, {sXF} offen\nbuffer_load_dword a255, {vL128}, {S_WS}, {sOF} offen\ns_mov_b64 exec, -1']
        if P.get('nt', 0) & 2: PT = [PT[0].replace(' offen', ' offen nt')]
        items = {'W0': w0, 'Tq': self.touch(S_WA, 12288, 32, f'v{AQ+13}'), 'To': self.touch(S_OA, 4096), 'TB': self.touch(S_WB, 12288),
                 'Tob': self.touch(S_OB, 4096), 'PT': PT, 'R': self.res_load(), 'CT': [self.code_touch(RES+2, 'a255')],
                 'TBq': [f'v_mul_u32_u24 v{RES+2}, 24, {vL128}\ns_mul_i32 s92, {sW}, {32*48}\ns_add_u32 s92, s92, {sJ}\ns_lshl_b32 s92, s92, 6\ns_mul_i32 s93, {sCH[0]}, 48\n'
                         f's_add_u32 s93, s93, s92\ns_mov_b32 exec_hi, 0\nbuffer_load_dword a255, v{RES+2}, {S_WB}, s93 offen\ns_mov_b32 exec_hi, -1'], 'T2': self.touch(S_WA, 12288, 32, f'v{AQ+14}', 1024 + 6144),
                 'st0': [f'buffer_load_dwordx2 v[14:15], v16, {S_WS}, s87 offen sc1'] + self.mark('st0')}
        for g in range(1, 4): items[f'W{g}'] = kvd(S_WA, g)
        for g in range(4):
            x = xdma(g); items[f'x{g}a'] = ([('bar0',)] if g == 3 else []) + x[:4]; items[f'x{g}b'] = x[4:]
            items[f'Q{g}'] = [('bar1',)] + self.w_dma(S_WA, g, 0, WQ)
            items[f'O{g}'] = [('bar3',)] + self.wo_dma(S_OA, 'v12', range(4*g, 4*g+4)) if g < 2 else self.wo_load(S_OA, 'v12', WOA, range(4*g, 4*g+4))
            items[f'B{g}'] = [('part',)] + kvd(S_WB, g)
            items[f'Bq{g}'] = [('bx',)] + self.w_dma(S_WB, g, 0, WQ)
        order = P.get('order', 'x0a W0 x0b x1a x1b W1 W2 st0 x2a x2b W3 x3a x3b Q0 O0 Q1 Q2 Q3 |part PT O1 O2 O3 |gath R CT B0 B1 B2 B3 Bq0 Bq1 Bq2 Bq3').split()
        need = {'x0': 'W0 x0a x0b', 'x1': 'W1 x1a x1b', 'x2': 'W2 st0 x2a x2b', 'w3': 'W3', 'x3': 'W3 x3a x3b', 'wq': 'Q0 Q1 Q2 Q3', 'wo0': 'O0 O1', 'wo1': 'O2 O3',
                'res': 'R', 'kvB': 'B0 B1 B2 B3', 'qB': 'Bq0 Bq1 Bq2 Bq3'}
        for k in P.get('skip', '').split(): items[k] = [x for x in items[k] if not isinstance(x, str)]
        seen = set()
        for o in order:
            if o[0] == '|': B.append((o[1:],)); continue
            B += items[o]; seen.add(o)
            for k, v in list(need.items()):
                if set(v.split()) <= seen: B += self.mark(k); del need[k]
        assert not need
        self.bpop(P.get('b0', 5))
        A(f's_mov_b32 {sSPIN}, 0')
        A(f'v_lshrrev_b32 v12, 5, {vLANE}')
        A(f'v_lshlrev_b32 {vTR0}, 9, v12')
        for (o, wd, sh) in [(2, 2, 6), (4, 1, 5), (0, 1, 4), (1, 1, 3)]:
            A(f'v_bfe_u32 v13, {vLANE}, {o}, {wd}'); A(f'v_lshl_add_u32 {vTR0}, v13, {sh}, {vTR0}')
        A(f'v_add_u32 {vTR1}, 0x10000, {vTR0}')
        A(f'v_add_u32 {vBK0}, s88, {vL16}'); A(f'v_add_u32 {vBK1}, 0x10000, {vBK0}')
        A(f'v_add_u32 {vMISC}, {MISC}, {vL16}')
        A(f'v_add_u32 {vBKO}, s88, {vBK1}')
        A(f's_lshl_b32 s91, {sW}, 7'); A(f's_add_u32 s91, s91, {RSB}')
        A(f'v_and_b32 v13, 31, {vLANE}')
        A(f'v_lshlrev_b32 {vF4}, 2, v13')
        A(f'v_lshl_add_u32 {vRSR}, v12, 4, s91')
        A(f'v_and_b32 v15, 15, {vLANE}'); A('v_xor_b32 v15, v15, v12'); A('v_lshlrev_b32 v15, 4, v15')
        A(f'v_lshl_add_u32 v15, v13, 8, v15'); A(f's_add_u32 s91, s89, {WQ}'); A(f'v_add_u32 v{XRD}, s91, v15')
        for s in range(1, 8): A(f'v_xor_b32 v{XRD+s}, {32*s}, v{XRD}')
        A(f'v_mov_b32 v16, {hx(ONES)}')
        self.pop(self.selector(), 9)
        self.pop(self.cs_addr(17), 9)
        A(self.wo_voff(AQ+12, 15))
        for r in range(16):
            m = 0
            for l in range(64):
                if 8*(r >> 2) + 4*(l >> 5) + (r & 3) <= (l & 31): m |= 1 << l
            A(f's_mov_b32 s{32+2*r}, {hx(m)}'); A(f's_mov_b32 s{33+2*r}, {hx(m >> 32)}')
        A('s_mov_b32 s96, 0xffff0000'); A('s_mov_b32 s97, 0xffff0000')
        A(f's_add_u32 {sOO}, {sXO}, {OB}')
        A(f's_lshl_b32 s91, {sTB}, 11'); A(f's_add_u32 {sST}, s91, {STAT}')
        A(f's_lshl_b32 s91, {sTB}, 7'); A(f's_add_u32 {sXF}, s91, {XF}'); A(f's_add_u32 {sOF}, s91, {OF}')
        A('s_getreg_b32 s86, hwreg(HW_REG_XCC_ID, 0, 4)')
        A(f's_lshl_b32 s87, {sTB}, 11'); A(f's_add_u32 s87, s87, {ST0}')
        A(f's_lshl_b32 s84, {sJ}, 7'); A('s_add_u32 s84, s84, s87')
        A(f'v_lshrrev_b32 v15, 2, {vLANE}'); A(f'v_and_or_b32 v15, {vLANE}, 3, v15'); A('v_lshlrev_b32 v15, 3, v15')
        A('v_lshrrev_b32 v14, 1, v13'); A('v_lshl_add_u32 v14, v14, 1, v12'); A('v_and_b32 v13, 1, v13'); A('v_lshl_add_u32 v14, v14, 1, v13')
        A(f'v_add_u32 v13, s88, {vTR0}')
        for i in range(4): A(f'v_mov_b32 v{AV+i}, 0')
        early = self.early_setup(AV+4)
        A.wait(vm=trow)
        for i in range(4):
            for r in range(2):
                A(f'v_dot2c_f32_bf16 v{AV+2*r}, v{AK+4*r+i}, v16'); A(f'v_dot2c_f32_bf16 v{AV+2*r+1}, v{AK+4*r+i}, v{AK+4*r+i}')
        A(f'v_permlane32_swap_b32 v{AV}, v{AV+1}'); A(f'v_permlane32_swap_b32 v{AV+2}, v{AV+3}')
        A(f'v_add_f32 v{AV}, v{AV}, v{AV+1}'); A(f'v_add_f32 v{AV+2}, v{AV+2}, v{AV+3}')
        A(f'v_permlane16_swap_b32 v{AV}, v{AV+2}'); A(f'v_add_f32 v{AV}, v{AV}, v{AV+2}')
        for r in (8, 4, 2, 1): A(f'v_add_f32_dpp v{AV}, v{AV}, v{AV} row_ror:{r} row_mask:0xf bank_mask:0xf')
        A('s_waitcnt lgkmcnt(0)')
        A(f's_add_u32 {sNON}, {sNON}, 0x9e3779b9')
        A(f's_add_u32 s85, {sNON}, 32'); A('s_add_u32 s91, s85, s86'); A(f'v_mov_b32 v{AV+1}, s91')
        A('s_mov_b32 exec_lo, 0xf000f'); A('s_mov_b32 exec_hi, 0xf000f')
        A(f'buffer_store_dwordx2 {vr(AV,2)}, v15, {S_WS}, s84 offen sc1')
        A('s_mov_b64 exec, -1')
        A(early)
        A('v_lshlrev_b32 v16, 5, v14')
        self.stamp('start')
        A(f'v_mov_b32 v12, v{AQ+12}')
        self.bpop(0, 'x0'); self.bpop(P.get('b1', 12))
        SEQ = list(range(30)) + ['mu'] + list(range(30, 32))
        tw = {}
        def rd(n):
            q = WF + 8*(n & 3); s = SEQ[n]
            if s == 'mu':
                A(f'ds_read_b128 {vr(q,4)}, {vMISC} offset:{CST-MISC}'); tw[n] = A(f'ds_read_b128 {vr(q+4,4)}, {vMISC} offset:{CST-MISC+1024}')
            else: self.tr(q, vTR0, WK + 1024*s); tw[n] = self.tr(q+4, vTR0, WV + 1024*s)
        CK, CV = QF+4, AQ+12
        cq = lambda g, i: KVA + 32*(i & 1) + 8*g + 4*(i >> 1)
        def csr(g):
            for i in range(4): self.tr(cq(g, i), 'v13', (WK, WV)[i & 1] + 8192*g + 1024*(i >> 1), acc=True)
        def csm(g): return [lambda i=i: self.csum((CK, CV)[i & 1], cq(g, i), g == 0 and i < 2, True) for i in range(4)]
        def xrd(g):
            self.bpop(0, f'x{g}')
            if g == 2:
                for s in range(8): A(f'v_add_u32 v{XRD+s}, 0x8000, v{XRD+s}')
            A.wait(vm=self.tk[f'x{g}'])
            so = {0: WO-WQ, 1: 0, 2: MISC-WQ-0x8000, 3: WO-WQ-0x8000}[g]
            for s in range(8): A(f'ds_read_b128 {vr(XR+4*(8*g+s),4)}, v{XRD+s} offset:{so}')
        def bar(g):
            self.barrier(); self.open.add(f'bar{g}'); self.stamp(f'chunk{g}')
        xrd(0); csr(0); bar(0)
        rd(0); rd(1)
        self.pop(csm(0), 9)
        dq = []; cr = 0; sf = self.stats_finish(14, True); pa = self.preA(0)
        pace = P.get('pace', [1.5]*24 + [1]*9); acc_ = 0
        for n in range(33):
            s = SEQ[n]; q = WF + 8*(n & 3); x = MU if s == 'mu' else XR + 4*s
            g1 = n // 8 + 1
            A.wait(lg=tw[n])
            self.mfma(AK, x, q, None if n == 0 else AK)
            if n % 8 == 6 and g1 < 4:
                bar(g1); dq = csm(g1) + dq
                if g1 == 2: dq += sf[:-4] + pa[2:6]
                if g1 == 3:
                    cw = self.cs_write(CK, RES, 'v17', 0*1024) + self.cs_write(CV, RES+2, 'v17', 1*1024)
                    dq += pa[:2] + cw + sf[-4:]
            if n + 2 < 33:
                if SEQ[n+2] == 'mu':
                    assert not dq
                    self.barrier()
                rd(n+2)
            self.mfma(AV, x, q+4, None if n == 0 else AV)
            acc_ += pace[n]
            if acc_ >= 1: self.bpop(int(acc_)); acc_ -= int(acc_)
            if n % 8 == 5 and g1 < 4:
                xrd(g1); csr(g1)
                if g1 == 2:
                    assert self.tk['st0'] <= self.tk['x2']
                    self.retry(['v_subrev_u32 v15, s85, v15', 'v_cmp_lt_u32 vcc, 15, v15'], [f'buffer_load_dwordx2 v[14:15], v16, {S_WS}, s87 offen sc1'])
                    A('v_cmp_ne_u32 vcc, s86, v15')
                    A('s_cmp_lg_u64 vcc, 0')
                    A(f's_cselect_b32 {sSLOW}, {hx(SLOW)}, 0')
                    if self.force_slow: A(f's_mov_b32 {sSLOW}, {hx(SLOW)}')
            cr = self.popb(dq, cr + (4 if n < 22 else 5))

    def early_setup(self, t):
        A = self.A
        A(f's_and_b32 s91, {sJ}, 1\ns_lshl1_add_u32 s91, {sC}, s91\ns_lshr_b32 s92, {sW}, 1\ns_lshl1_add_u32 s91, s91, s92\n'
          f's_lshr_b32 s92, {sJ}, 1\ns_and_b32 s93, {sW}, 1\n'
          f's_lshl_b32 {sOFR}, s91, 7\ns_add_u32 {sXW}, {sOFR}, s93\ns_lshl_b32 {sXW}, {sXW}, 8\ns_add_u32 {sOR}, {sXW}, {OB}\n'
          f's_lshl1_add_u32 s93, s92, s93\ns_lshl3_add_u32 {sXFW}, s93, {sOFR}\ns_add_u32 {sXFW}, {sXFW}, {XF}\ns_add_u32 {sOFR}, {sOFR}, {OF}\n'
          f's_lshl_b32 s93, s92, 12\ns_add_u32 {sXW}, {sXW}, s93\n'
          f's_lshr_b32 s93, s92, 2\ns_lshl1_add_u32 s93, s91, s93\ns_lshl_b32 s93, s93, 10\ns_and_b32 {sSW}, s92, 3\n'
          f's_lshl2_add_u32 {sSW}, {sSW}, s93\ns_add_u32 {sSW}, {sSW}, {STAT}')
        for i in range(4): A(f'v_mov_b32 v{t+i}, {hx(ONES)}')
        A(f'v_lshrrev_b32 v{t+4}, 3, {vLANE}\nv_lshl_add_u32 v{t+4}, v{t+4}, 10, {vL16}\nv_mov_b32 v{t+5}, 0')
        return (f's_lshl_b32 s91, {sJ}, 6\ns_add_u32 s91, s91, {sTB}\ns_mul_i32 s91, s91, {REC}\ns_add_u32 s91, s91, {KVB}\n'
                f's_mov_b64 exec, 0xffff\nbuffer_store_dwordx4 {vr(t,4)}, v{t+4}, {S_WS}, s91 offen offset:3072 sc1\n'
                f's_add_u32 s91, s91, {KVB_L}\nbuffer_store_dwordx4 {vr(t,4)}, v{t+4}, {S_WS}, s91 offen offset:3072 sc1\ns_mov_b64 exec, -1\n'
                f'buffer_store_dword v{t+5}, {vL16}, {S_WS}, {sSW} offen')

    def res_load(self):
        return [('part',), self.row_addr(RES, RES+1) + f'\nbuffer_load_dwordx4 {vr(RES+4,4)}, v{RES}, {S_X0}, s91 offen\n'
                f'buffer_load_dwordx4 {vr(RES+12,4)}, v{RES}, {S_X0}, s91 offen offset:64\n'
                f's_cmp_lg_u32 {sMODE}, 0\ns_cselect_b64 s[4:5], s[24:25], s[28:29]\ns_cselect_b32 s6, s26, s30\n'
                f's_cselect_b32 s91, {hx(XB)}, 0\ns_add_u32 {sXO}, {sXO}, s91\ns_add_u32 {sXW}, {sXW}, s91']

    def row_addr(self, d, t):
        return (f'v_and_b32 v{d}, 15, {vLANE}\nv_lshlrev_b32 v{d}, 10, v{d}\nv_lshrrev_b32 v{t}, 5, {vLANE}\nv_lshl_add_u32 v{d}, v{t}, 4, v{d}\n'
                f'v_and_b32 v{t}, 16, {vLANE}\nv_lshl_add_u32 v{d}, v{t}, 1, v{d}\n'
                f's_sub_u32 s91, {sOFR}, {OF}\ns_lshl_b32 s91, s91, 8\ns_and_b32 s92, {sW}, 1\ns_lshl_b32 s92, s92, 14\ns_add_u32 s91, s91, s92\n'
                f's_lshr_b32 s92, {sJ}, 1\ns_lshl_b32 s92, s92, 7\ns_add_u32 s91, s91, s92')

    def unpack_res(self):
        Q = [f'v_permlane16_swap_b32 v{RES+8*u+4+i}, v{RES+8*u+6+i}' for u in range(2) for i in range(2)]
        for u in range(2):
            for i in range(4):
                s = RES + 8*u + 4 + i; d = RES + 8*u + 2*i
                Q.append(f'v_lshlrev_b32 v{d}, 16, v{s}\nv_and_b32 v{d+1}, 0xffff0000, v{s}')
        return Q

    P1SEQ = list(range(29)) + ['mu'] + [29, 30, 31]
    def p1_rd(self, n, L, tw):
        A = self.A; q = WF + 8*(n & 3); s = self.P1SEQ[n]; mat = L % 2
        if s != 'mu':
            self.wrd(L, q, vTR0, WK + 1024*s); tw[n] = self.wrd(L, q+4, vTR0, WV + 1024*s)
        else:
            A(f'ds_read_b128 {vr(q,4)}, {vMISC} offset:{CST-MISC+(3*mat)*1024}')
            tw[n] = A(f'ds_read_b128 {vr(q+4,4)}, {vMISC} offset:{CST-MISC+(3*mat+1)*1024}')
    def pass1(self, L, tw, E):
        A = self.A; isA = (L % 2 == 0); mat = L % 2; P = self.p
        tx = {}
        D = P['depth']
        def ldx(s):
            if s % 8 == 0: A(f's_add_u32 s90, {sXO}, {sCH[s//8]}')
            if s % 8 == 4: A('s_add_u32 s90, s90, 4096')
            tx[s] = A(f'buffer_load_dwordx4 {vr(XR+4*s,4)}, {vL16}, {S_XB}, s90 offen offset:{(s%4)*1024} sc1')
        st = {}
        sl = [f'buffer_load_dwordx4 {vr(AQ+4*i,4)}, {vL16}, {S_WS}, {sST} offen offset:{1024*i} sc1' for i in range(2)]
        F = [lambda i=i: st.__setitem__(i, A(sl[i])) for i in range(2)]
        for s in range(D):
            ldx(s)
            if s >= 1: self.pop(E, 1 if s - 1 < P.get('e_first', 7) else 0)
        nx = D
        if L == 1:
            tc = {}; acc = [XR+96, XR+112]
            def rc(n): tc[n] = self.tr(KVB_A + 4*n, 'v13', self.kv_off(n), acc=True)
            for n in range(6): rc(n)
            for n in range(16):
                A.wait(lg=tc[n])
                self.csum(acc[n >> 3], KVB_A + 4*n, n % 8 == 0, True)
                if n + 6 < 16: rc(n+6)
                if n in P.get('l1h', (5, 7, 9, 11, 13, 15)):
                    if F: self.pop(F, 1)
                    else: ldx(nx); nx += 1
            cw = self.cs_write(acc[0], 14, 'v17', 3*1024) + self.cs_write(acc[1], 14, 'v17', 4*1024)
            E = ['\n'.join(cw[2*i:2*i+2]) for i in range(5)]
        par = L & 1; op = '0x80' if par else '0xfe'
        chk = [f'v_bitop3_b32 v14, v{AQ}, v{AQ+1}, v{AQ+2} bitop3:{op}'] + \
              [f'v_bitop3_b32 v14, v14, v{AQ+2*i+1}, v{AQ+min(2*i+2,7)} bitop3:{op}' for i in range(1, 4)] + \
              ['v_and_b32 v14, 1, v14', f'v_cmp_ne_u32 vcc, {par}, v14']
        lo, lb = A.lab('ro'), A.lab('rb')
        A.tail += [f'{lo}:'] + sl + [f's_add_u32 {sSPIN}, {sSPIN}, 1', f's_cmp_lt_u32 {sSPIN}, {SPIN_LIMIT}', 's_cselect_b64 s[94:95], -1, 0',
                   's_waitcnt vmcnt(0)'] + chk + ['s_and_b64 vcc, vcc, s[94:95]', f's_cbranch_scc1 {lo}', f's_branch {lb}']
        G = [lambda: A.wait(vm=st[1])] + chk[:-1] + [chk[-1] + f'\ns_cbranch_vccnz {lo}\n{lb}:']
        for i in range(2): G.append(f'v_pk_add_f32 {vr(AQ+2*i,2)}, {vr(AQ+2*i,2)}, {vr(AQ+4+2*i,2)}')
        G.append(f'v_pk_add_f32 {vr(AQ,2)}, {vr(AQ,2)}, {vr(AQ+2,2)}')
        G.append(f'v_add_f32 v14, v{AQ}, v{AQ+1}')
        G += self.stats_finish(14, isA)
        G2 = self.preA(L) if isA else self.preB(L)
        g0 = P.get('g0n', 8)
        cr = 0
        for n in range(33):
            s = self.P1SEQ[n]
            q = WF + 8*(n & 3); x = MU if s == 'mu' else XR + 4*s
            A.wait(vm=tx.get(s), lg=tw[n])
            if n in (0, 8, 16, 24, 30): self.stamp(f'L{L}.p1s{n}')
            if isA: self.mfma(AK, x, q, None if n == 0 else AK)
            else:   self.mfma(AK, q, x, None if n == 0 else AK)
            if n == P.get('bq', 24): A('s_barrier')
            if n + 2 <= 32: self.p1_rd(n+2, L, tw)
            self.mfma(AV, x, q+4, None if n == 0 else AV)
            if F: self.pop(F, 1)
            elif nx < 32:
                ldx(nx); nx += 1
                if L == 1 and nx < 32 and n in P.get('l1x', (6, 9, 12, 15)): ldx(nx); nx += 1
            elif n % 2 == 0: self.bpop(1)
            if L == 1 or n % 2 == 1: self.pop(E, 1)
            if n == P.get('bq', 24) - 4: assert not E
            if n >= g0:
                cr = self.popb(G if G else G2, cr + (P.get('gb', 2.4) if nx < 32 else 6))
                if n == 27: self.pop(G, 99)
        self.pop(G2, 99)

    def pass2(self, L, F, pre=None, at=None, before=None):
        A = self.A; mat = L % 2; at = at or {}
        tw = pre if pre else self.pass2_pre(L)
        def rd(s):
            q = WF + 4*((s + 4) & 7)
            if s < 32: tw[s] = self.wrd(L, q, vTR1, WQ - 65536 + 1024*s)
            else: tw[s] = A(f'ds_read_b128 {vr(q,4)}, {vMISC} offset:{CST-MISC+(3*mat+2)*1024}')
        for s in range(33):
            q = WF + 4*((s + 4) & 7); x = XR + 4*s if s < 32 else MU
            A.wait(lg=tw[s])
            self.mfma(AQ, q, x, None if s == 0 else AQ)
            if before: self.pop(before, 1)
            if s + 4 == 32: self.pop(F, 99)
            if s + 4 <= 32: rd(s+4)
            self.pop(F, 1)
            self.pop(at.get(s, []), 99)
    def pass2_pre(self, L):
        return {s: self.wrd(L, WF + 4*(s+4), vTR1, WQ - 65536 + 1024*s) for s in range(4)}

    def colsum_q(self, L, abase, acc):
        A = self.A
        A(f's_lshl_b32 s91, {sW}, 11'); A(f'v_add_u32 v13, s91, {vTR1}')
        tc = {n: self.tr(abase + 4*n, 'v13', WQ - 65536 + self.bk_off(n), acc=True) for n in range(8)}
        if L == 1: self.pop(self.selector(), 9)
        A.wait(lg=tc[3])
        pre = self.pass2_pre(L)
        for n in range(8):
            A.wait(lg=tc[n]); self.csum(acc, abase + 4*n, n == 0, True)
        return pre

    def phi(self, acc, e, dst, n=16, F=None):
        A = self.A; F = F or []
        for i in range(n):
            A(f'v_exp_f32_e64 v{e+i}, v{acc+i} clamp')
            if i % 4 == 3: self.pop(F, 1)
        for i in range(n//2): A(f'v_pk_fma_f32 {vr(acc+2*i,2)}, {vr(acc+2*i,2)}, s[86:87], s[86:87] op_sel:[0,0,1] op_sel_hi:[1,0,1]')
        self.pop(F, 1)
        for i in range(n):
            A(f'v_max_f32 v{acc+i}, s87, v{acc+i}')
            if i % 8 == 7: self.pop(F, 1)
        for i in range(n//2): A(f'v_pk_add_f32 {vr(acc+2*i,2)}, {vr(acc+2*i,2)}, {vr(e+2*i,2)}')
        self.pop(F, 1)
        for i in range(n//2): A(f'v_cvt_pk_bf16_f32 v{dst+i}, v{acc+2*i}, v{acc+2*i+1}')

    def preA(self, L):
        la = L // 2
        return [f's_mul_i32 s91, {sW}, 3072\nv_add_u32 v14, s91, {vMISC}',
                f's_lshl_b32 s91, {sW}, 10\nv_add_u32 v13, s91, {vMISC}',
                f's_mul_i32 s91, {sJ}, 3\ns_add_u32 s91, s91, {sW}\ns_lshl_b32 s91, s91, 14\ns_add_u32 s85, s91, {PART + la*PART_L}',
                f's_lshl_b32 s91, {sC}, 10\ns_add_u32 s84, s91, s85\ns_add_u32 s88, {sNON}, {16+L}',
                f's_mov_b32 s86, {hx(f2u(LN2))}\ns_mov_b32 s87, {hx(f2u(1e-6))}',
                f's_cmp_eq_u32 {sW}, 3\ns_cselect_b32 s91, 0x40000000, 0\nv_add_u32 v15, s91, {vL16}'] + self.selector()

    def layerA(self, L):
        A = self.A; P = self.p
        self.stamp(f'L{L} pass1')
        self.bpop(P.get('e1', 1))
        for i in range(8): A(f'v_pk_mul_f32 {vr(AK+2*i,2)}, {vr(AK+2*i,2)}, {vr(AQ+2*i,2)}')
        for i in range(8): A(f'v_pk_mul_f32 {vr(AV+2*i,2)}, {vr(AV+2*i,2)}, {vr(AQ+2*i,2)}')
        self.bpop(P.get('e1', 1))
        for i in range(8): A(f'v_cvt_pk_bf16_f32 v{WF+8+i}, v{AV+2*i}, v{AV+2*i+1}')
        self.phi(AK, WF+16, WF, 8)
        self.phi(AK+8, WF+16, WF+4, 8, [lambda: self.mfma(AQ, WF, WF+8, None), lambda: self.csum(AV, WF, True)])
        self.stamp(f'L{L}.phik')
        pre = {}
        if L: pre[0] = self.wrd(L, WF+16, vTR1, WQ - 65536)
        self.mfma(AQ, WF+4, WF+12, AQ); self.csum(AV, WF+4, False)
        if L:
            for s in range(1, 4): pre[s] = self.wrd(L, WF + 4*(s+4), vTR1, WQ - 65536 + 1024*s)
        G = AK
        for i in range(8):
            A(f'v_cndmask_b32_e64 v{G+4*(i//3)+i%3}, v{AQ+i}, v{AQ+8+i}, {sHALF}')
            if i in (2, 5): A(f'ds_write_b96 v14, {vr(G+4*(i//3),3)} offset:{1024*(i//3)}')
        A(f'v_mov_b32 v{G+10}, v{AV}')
        A(f'ds_write_b96 v14, {vr(G+8,3)} offset:2048')
        A(f'v_mov_b32 v{WF+3}, s88')
        if L == 0: self.bpop(0, 'wq'); A.wait(vm=self.tk['wq'])
        self.stamp(f'L{L}.preB1')
        self.barrier()
        self.stamp(f'L{L}.B1')
        t = [A(f'ds_read_b96 {vr(WF+4*p,3)}, v13 offset:{3072*p}') for p in range(4)]
        for p in range(1, 4):
            A.wait(lg=t[p])
            A(f'v_pk_add_f32 {vr(WF,2)}, {vr(WF,2)}, {vr(WF+4*p,2)}'); A(f'v_add_f32 v{WF+2}, v{WF+2}, v{WF+4*p+2}')
        A(f'buffer_store_dwordx4 {vr(WF,4)}, v15, {S_WS}, s84 offen sc1')
        self.stamp(f'L{L} part')
        self.open.add('part'); self.bpop(P.get('a0', 1))
        F = []
        if L == 0:
            pre = self.colsum_q(L, QA, AK)
            F = ['s_nop 0'] + self.cs_write(AK, QF+4, 'v17', 2*1024) + ['s_nop 0'] * 6 + ['s_barrier']
            W = []
        else: W = self.kv_write(KVB_A)
        S = [f's_mul_i32 s91, {sW}, 12\ns_add_u32 s91, s91, {TOT}\nv_lshl_add_u32 v14, {vLANE}, 5, s91',
             f'v_and_b32 v15, 3, {vLANE}\nv_bfe_u32 v16, {vLANE}, 2, 1', 'v_lshl_add_u32 v15, v16, 3, v15\n' f'v_bfe_u32 v16, {vLANE}, 3, 1',
             'v_lshl_add_u32 v15, v16, 2, v15\n' f'v_bfe_u32 v16, {vLANE}, 4, 1', 'v_lshl_add_u32 v15, v16, 7, v15\nv_lshlrev_b32 v15, 2, v15',
             f'v_add_u32 v15, {ZOF}, v15\nv_add_u32 v16, 8, v14',
             f's_cmp_eq_u32 {sW}, 2\ns_cselect_b64 vcc, -1, 0\nv_cndmask_b32 v15, v16, v15, vcc\nv_lshrrev_b32 v16, 5, {vLANE}',
             f'v_lshlrev_b32 v16, 5, v16\nv_add_u32 v16, {ZOF}, v16', f'v_lshlrev_b32 v13, 5, {vLANE}\nv_add_u32 v13, {TOT}, v13',
             f'v_cndmask_b32_e64 v16, v13, v16, {sHALF}\ns_cmp_eq_u32 {sW}, 3\ns_cselect_b64 vcc, 0, -1',
             f's_add_u32 {sOO}, {sOO}, {sSLOW}\ns_lshl_b32 s89, {sJ}, 11\ns_add_u32 s89, s89, {sOO}',
             f's_lshl3_add_u32 s84, {sJ}, {sOF}\ns_add_u32 {sEXP}, {sNON}, {8+L}']
        def gtxt(p):
            pre_ = f's_lshr_b32 s90, {sC}, 2\ns_add_u32 s90, s90, {1+p//4}\ns_and_b32 s90, s90, 3\ns_lshl_b32 s90, s90, 12\ns_add_u32 s90, s90, s85\n' if p % 4 == 0 else ''
            return pre_ + f'buffer_load_dwordx4 {vr(XR+4*p,4)}, {vL16}, {S_WS}, s90 offen offset:{(p%4)*1024} sc1'
        tg = {}; A.nreg += 1; reg = A.nreg
        def gl(p):
            l = A.lab('g3')
            A(f's_cbranch_vccz {l}')
            A.stack.append(reg); tg[p] = A(gtxt(p)); A.stack.pop()
            A(f'{l}:')
        GL = [lambda p=p: gl(p) for p in range(16)]
        gs = list(P.get('gs', [14,16,17,19,20,22,23,25,26,28,29,31,32]) if L else P.get('gs0', [20,22,23,25,26,28,29,31,32]))
        at = {s: [S[s]] for s in range(len(S))}
        if L == 0:
            for s in P.get('p2b', range(0, 18)): at.setdefault(s, []).append(lambda: self.bpop(1))
            at.setdefault(gs[0] - 1, []).append(lambda: self.bpop(0, 'wo0'))
            if P.get('ct0', 0): at[12].append(self.code_touch(QF+6, 'a255'))
        else:
            for s in P.get('kvp2', (1, 4, 7, 10)): at.setdefault(s, []).append(W.pop(0))
        for k, s in enumerate(gs):
            assert s > k and s >= len(S) - 2
            at.setdefault(s, []).append(GL.pop(0))
        self.pass2(L, F, pre=pre or None, at=at)
        self.stamp(f'L{L} pass2')
        self.pop(GL, 2 if L else 4)
        for i in range(8): A(f'v_pk_mul_f32 {vr(AQ+2*i,2)}, {vr(AQ+2*i,2)}, v[8:9] op_sel_hi:[1,0]')
        self.phi(AQ, WF+16, QF, 16, GL)
        assert not GL
        self.open.add('gath'); self.bpop(P.get('g3', 4))
        self.pop(W, 99 if L == 0 else P.get('kvg', 12))
        self.stamp(f'L{L}.phiq')
        lre = A.lab('gather'); lj = A.lab('gatherj'); l3 = A.lab('gather3')
        def gsum(g):
            r = XR + 16*g
            o = [f'v_xor_b32 v{r+3}, s88, v{r+3}']
            for p in range(1, 4):
                o += [f'v_pk_add_f32 {vr(r,2)}, {vr(r,2)}, {vr(r+4*p,2)}', f'v_add_f32 v{r+2}, v{r+2}, v{r+4*p+2}',
                      f'v_bitop3_b32 v{r+3}, v{r+3}, v{r+4*p+3}, s88 bitop3:0xf6']
            return o
        A(f's_cbranch_vccz {l3}')
        A.cond_begin(); A.stack.append(reg)
        for g in range(4):
            o = gsum(g)
            if g < 3: A.wait(vm=tg[4*g+3]); self.pop(o, 99)
            else:
                A.wait(vm=tg[13]); self.pop(o, 4); A.wait(vm=tg[14]); self.pop(o, 3); A.wait(vm=tg[15]); self.pop(o, 3)
        A(f'{lj}:')
        T_ = XR + 64
        A(f'v_or3_b32 v{T_+3}, v{XR+3}, v{XR+19}, v{XR+35}')
        A(f'v_pk_add_f32 {vr(T_,2)}, {vr(XR,2)}, {vr(XR+16,2)}'); A(f'v_add_f32 v{T_+2}, v{XR+2}, v{XR+18}')
        A(f'v_or_b32 v{T_+3}, v{T_+3}, v{XR+51}')
        A(f'v_pk_add_f32 {vr(T_+4,2)}, {vr(XR+32,2)}, {vr(XR+48,2)}'); A(f'v_add_f32 v{T_+6}, v{XR+34}, v{XR+50}')
        A(f'v_cmp_ne_u32 vcc, 0, v{T_+3}' if 'gchk' not in P.get('x', '') else f'v_cmp_ne_u32 vcc, v{T_+3}, v{T_+3}')
        A(f'v_pk_add_f32 {vr(T_,2)}, {vr(T_,2)}, {vr(T_+4,2)}'); A(f'v_add_f32 v{T_+2}, v{T_+2}, v{T_+6}')
        lok = A.lab('gok')
        inl = P.get('inl', 3) & 2
        A(f's_cbranch_vccz {lok}' if inl else f's_cbranch_vccnz {lre}')
        pos = len(A.L)
        A(f'{lok}:')
        A(f'ds_write2_b32 v14, v{T_}, v{T_+1} offset0:0 offset1:1')
        A(f'ds_write_b32 v15, v{T_+2}')
        A.stack.pop(); A.cond_end()
        A(f'{l3}:')
        tl = [f'{lre}:', f's_add_u32 {sSPIN}, {sSPIN}, 1', f's_cmp_lt_u32 {sSPIN}, {SPIN_LIMIT}', f's_cbranch_scc0 {lok}', 's_mov_b32 s91, 0']
        for g in range(4):
            l = A.lab('gs')
            tl += [f'v_cmp_ne_u32 vcc, 0, v{XR+16*g+3}', f's_cbranch_vccz {l}', f's_bitset1_b32 s91, {g}']
            tl += '\n'.join(gtxt(p) for p in range(4*g, 4*g+4)).split('\n') + [f'{l}:']
        tl += ['s_waitcnt vmcnt(0)']
        for g in range(4):
            l = A.lab('gt')
            tl += [f's_bitcmp1_b32 s91, {g}', f's_cbranch_scc0 {l}'] + gsum(g) + [f'{l}:']
        tl += [f's_branch {lj}']
        if inl: A.L[pos:pos] = tl
        else: A.tail += tl
        if L == 0: A.wait(vm=self.tk['wo0'])
        self.stamp(f'L{L}.preB2')
        self.barrier(); self.open.add('b2')
        self.stamp(f'L{L} gather')
        t = {}
        for H in range(2):
            A(f'ds_read_b128 {vr(WF+8*H,4)}, v16 offset:{512*H}'); t[H] = A(f'ds_read_b128 {vr(WF+8*H+4,4)}, v16 offset:{512*H+16}')
        R1 = self.wo_write(WOA, 1)
        if L == 0:
            self.bpop(P.get('g0', 0), 'wo1'); self.bpop(0, 'res')
            R1 = [lambda: A.wait(vm=max(self.tk['wo1'], self.tk['res'])), '\n'.join(self.unpack_res())] + R1
        A(f'v_mov_b32 v12, {sEXP}'); A(f'v_mov_b32 v13, {sEXP}'); A(f'v_mov_b32 v14, {hx(f2u(LOG2E))}')
        self.op_addr(L)
        for H in range(2):
            A.wait(lg=t[H])
            for i in range(4): A(f'v_cvt_pk_bf16_f32 v{WF+16+4*H+i}, v{WF+8*H+2*i}, v{WF+8*H+2*i+1}')
            self.mfma(AK + 16*H, WF+16+4*H, QF+4*H, None)
        for H in range(2):
            a = AK + 16*H
            A(f'v_fmaak_f32 v{a+8}, v{a+8}, v14, {hx(f2u(1e-6*LOG2E))}')
            A(f'v_rcp_f32 v{a+8}, v{a+8}')
            for i in range(4): A(f'v_pk_mul_f32 {vr(a+2*i,2)}, {vr(a+2*i,2)}, {vr(a+8,2)} op_sel_hi:[1,0]')
            for i in range(4): A(f'v_cvt_pk_bf16_f32 v{AQ+4*H+i}, v{a+2*i}, v{a+2*i+1}')
            t = self.moded([f'buffer_store_dwordx4 {vr(AQ+4*H,4)}, {vL16}, {S_WS}, s89 offen offset:{1024*H}'])
        self.stamp(f'L{L}.ost')
        self.bpop(P.get('g1', 2))
        return t, [f'buffer_store_dwordx2 v[12:13], {vF4}, {S_WS}, s84 offen'], R1, W

    def op_addr(self, L):
        A = self.A
        A(f'v_and_b32 v16, 48, {vLANE}'); A(f'v_lshl_add_u32 v15, v16, 4, {vL16}')
        A(f'v_and_b32 v16, 16, {vLANE}'); A(f'v_mad_u32_u24 v16, v16, 48, {vL16}')
        if L < 2:
            A(f'v_bfe_u32 v{MU+1}, {vLANE}, 2, 3'); A(f'v_lshlrev_b32 v{MU}, 7, v{MU+1}')
            A(f'v_lshrrev_b32 v{MU+1}, 1, v{MU+1}'); A(f'v_lshl_add_u32 v{MU}, v{MU+1}, 5, v{MU}')
            A(f'v_and_b32 v{MU+1}, 3, {vLANE}'); A(f'v_lshl_add_u32 v{MU}, v{MU+1}, 3, v{MU}')
            A(f'v_lshrrev_b32 v{MU+1}, 5, {vLANE}'); A(f'v_or_b32 v{MU+1}, 32, v{MU+1}'); A(f'v_lshl_add_u32 v{MU}, v{MU+1}, 11, v{MU}')
            for f in range(1, 4): A(f'v_xor_b32 v{MU+f}, {32*f}, v{MU}')
        else: A(f'v_add_u32 v{MU}, 0x10000, {vL16}')
        A(f's_add_u32 {sOR}, {sOR}, {sSLOW}')

    def outproj(self, L, tost, oflags, R1, W):
        A = self.A; last = (L == self.nl - 1); P = self.p
        early_bar = (L == 1)
        SV = self.wo_save((WOA, WOB)[L]) if L < 2 else []
        RING = [XR+64+4*i for i in range(16)] + [WF+4*i for i in range(8)] + [AK+4*i for i in range(8)]
        to = {}; tw = {}; nr = 0
        def rd(k):
            nonlocal nr
            for _ in range(k):
                if nr >= 64: return
                m = nr; S_, f = m >> 2, m & 3
                o = self.wo_off(S_ & 12) - 65536 + 4096*(S_ & 3)
                if L < 2: tw[m] = self.tr(RING[m & 31], f'v{MU+f}', o, 1024)
                else: tw[m] = A(f'ds_read_b128 {vr(RING[m & 31],4)}, v{MU} offset:{o+1024*f}')
                nr += 1
        self.pop(R1, P.get('r1a', 5))
        self.flag(tost, oflags)
        self.bpop(P.get('g2', 2))
        self.probe_(sOFR, 12)
        self.stamp(f'L{L} opub')
        self.pop(R1, 99)
        if early_bar: self.barrier()
        rd(P.get('on0', 10))
        self.stamp(f'L{L}.prepoll')
        self.spin(sOFR, 12)
        self.stamp(f'L{L} opoll'); self.open.add('opoll')
        def ldo(s):
            if s % 4 == 0: A(f's_add_u32 s90, {sOR}, {sCH[s//4]}')
            if s % 4 == 2: A('s_add_u32 s90, s90, 4096')
            to[s] = A(f'buffer_load_dwordx4 {vr(XR+4*s,4)}, v15, {S_WS}, s90 offen offset:{(s%2)*2048} sc1')
        D = 8
        for s in range(D):
            ldo(s)
            if s >= 1: rd(P.get('on1', 3))
        assert nr <= 32
        fin = P.get('fin', 1)
        if last and fin:
            S = [self.row_addr(13, 14) + '\ns_mov_b32 s84, s91',
                 f'v_bfe_u32 v14, v13, 4, 2\nv_xor_b32 v14, v14, {vLANE}\nv_and_b32 v14, 7, v14\nv_lshlrev_b32 v14, 4, v14\n'
                 f'v_lshrrev_b32 v13, 10, v13\nv_lshl_add_u32 v14, v13, 7, v14\ns_lshl_b32 s91, {sW}, 11\nv_add_u32 v17, s91, v14\nv_xor_b32 v18, 64, v17',
                 f'v_lshrrev_b32 v13, 3, {vLANE}\nv_xor_b32 v14, v13, {vLANE}\nv_and_b32 v14, 7, v14\nv_lshlrev_b32 v14, 4, v14\nv_lshl_add_u32 v13, v13, 10, v14\ns_add_u32 s85, s84, 8192']
        elif last: S = [self.row_addr(13, 14) + '\ns_mov_b32 s84, s91']
        else: S = [f's_add_u32 {sXO}, {sXO}, {sSLOW}\ns_add_u32 {sST}, {sST}, {sSLOW}\ns_add_u32 {sXW}, {sXW}, {sSLOW}\ns_add_u32 {sSW}, {sSW}, {sSLOW}',
                   f's_add_u32 {sEXP}, {sNON}, {L+1}\nv_mov_b32 v{QF+4}, {sEXP}\nv_mov_b32 v{QF+5}, {sEXP}',
                   f's_not_b64 s[86:87], {sHALF}\ns_bitcmp1_b32 {sW}, 0\ns_cselect_b64 s[86:87], {sHALF}, s[86:87]']
        barred = early_bar
        for s in range(16):
            A.wait(vm=to[s], lg=tw[4*s+3])
            if s in (0, 8, 15): self.stamp(f'L{L}.ops{s}')
            for f in range(4):
                m = 4*s + f
                A(f'v_mfma_f32_16x16x32_bf16 {vr(RES+4*f,4)}, {vr(RING[m & 31],4)}, {vr(XR+4*s,4)}, {vr(RES+4*f,4)}')
                if nr == 32 and not barred: A('s_barrier'); barred = True
                if nr <= m + 32 and (s >= D or f in P.get('rdp', (0, 2))): rd(1)
                if last and f == 1 and s == 8 and P.get('wb'):
                    l = A.lab('wb')
                    A(f's_and_b32 s91, {sTB}, 7'); A(f's_or_b32 s91, s91, {sJ}'); A(f's_cbranch_scc1 {l}')
                    A.cond_begin(); A('buffer_wbl2 sc1'); A.cond_end(); A(f'{l}:')
                if f == 1:
                    if s + D < 16: ldo(s+D)
                    elif s in P.get('opb', (8, 10, 12, 14)): self.bpop(1)
                if nr >= 64 and f == 3:
                    if S: self.pop(S, 1)
                    elif not W: self.pop(SV, 2)
                if s >= P.get('ows', 8) and f == 2 and s < P.get('owe', 15): self.pop(W, 1)
        self.pop(S, 99)
        for F_ in range(2):
            q = AQ + 4*F_
            for k in range(4): A(f'v_cvt_pk_bf16_f32 v{q+k}, v{RES+8*F_+2*k}, v{RES+8*F_+2*k+1}')
        for F_ in range(2):
            q = AQ + 4*F_
            for i in range(2): A(f'v_permlane16_swap_b32 v{q+i}, v{q+2+i}')
            if last and fin: A(f'ds_write_b128 v{17+F_}, {vr(q,4)}')
            elif last: A(f'buffer_store_dwordx4 {vr(q,4)}, v13, {S_OUT}, s84 offen offset:{64*F_}')
            else: t = self.moded([f'buffer_store_dwordx4 {vr(q,4)}, v16, {S_XB}, {sXW} offen offset:{2048*F_}'])
        if last and fin:
            tt = [A(f'ds_read_b128 {vr(AQ+8+4*i,4)}, {vBK0} offset:{1024*i}') for i in range(2)]
            for i in range(2):
                A.wait(lg=tt[i]); A(f'buffer_store_dwordx4 {vr(AQ+8+4*i,4)}, v13, {S_OUT}, s{84+i} offen' + ['', '', ' sc1', ' nt', ' sc1 nt'][fin])
        if last:
            self.stamp(f'L{L} out')
            return
        self.stamp(f'L{L}.xst')
        A(f'v_pk_add_f32 v[12:13], {vr(RES,2)}, {vr(RES+2,2)}'); A(f'v_pk_mul_f32 v[14:15], {vr(RES,2)}, {vr(RES,2)}')
        A(f'v_pk_fma_f32 v[14:15], {vr(RES+2,2)}, {vr(RES+2,2)}, v[14:15]')
        E = [] if L == 0 else self.q_write(QB if L % 2 == 0 else QA) + self.wo_write(WOA if L % 2 == 1 else WOB, 0)
        def chore():
            if W: self.pop(W, 1)
            else: self.pop(SV, 3)
        for i in range(2, 8):
            A(f'v_pk_add_f32 v[12:13], v[12:13], {vr(RES+2*i,2)}'); A(f'v_pk_fma_f32 v[14:15], {vr(RES+2*i,2)}, {vr(RES+2*i,2)}, v[14:15]')
            if i in (3, 6): chore()
        A('v_add_f32 v12, v12, v13'); A('v_add_f32 v14, v14, v15')
        A('v_permlane32_swap_b32 v12, v14'); A('v_add_f32 v12, v12, v14')
        A('v_mov_b32 v13, v12'); A('v_permlane16_swap_b32 v12, v13'); A('v_add_f32 v12, v12, v13')
        A('v_or_b32 v12, 1, v12' if (L + 1) & 1 else 'v_and_b32 v12, -2, v12')
        A('s_mov_b64 exec, s[86:87]')
        self.moded([f'buffer_store_dword v12, {vL16}, {S_WS}, {sSW} offen'])
        A('s_mov_b64 exec, -1')
        self.stamp(f'L{L}.stst')
        self.bpop(P.get('x1', 2))
        for _ in range(P.get('xch', 2)): chore()
        self.flag(t, [f'buffer_store_dwordx2 {vr(QF+4,2)}, {vF4}, {S_WS}, {sXFW} offen'])
        if L == 0:
            self.bpop(P.get('x2', 0), 'kvB')
            A(f's_lshl_b32 s91, {sW}, 11'); A(f'v_add_u32 v13, s91, {vTR0}')
        self.probe_(sXF, 16)
        self.stamp(f'L{L} xpub')
        self.pop(W, 99); self.pop(SV, 99)
        if L == 1: A(f'v_mov_b32 {vTR0}, {vL16}'); A(f'v_add_u32 {vTR1}, 0x10000, {vL16}')
        if L == 0:
            self.pop(self.selector(), 9)
            A.wait(vm=self.tk['kvB'])
        self.barrier(); self.open.add('bx')
        tw = {}
        self.p1_rd(0, L+1, tw); self.p1_rd(1, L+1, tw)
        self.pop(E, P.get('xch2', 2))
        self.spin(sXF, 16)
        self.stamp(f'L{L} xpoll')
        return tw, E

    def treg(self, t): return XR + 12*(t if t >= 0 else (3 - t if t >= -4 else -5 - t))
    def preB(self, L):
        lb = L // 2
        return [f's_mul_i32 s91, {sW}, {REC}\nv_add_u32 v12, s91, {vMISC}',
                f's_lshl_b32 s89, {sJ}, 6\ns_add_u32 s89, s89, {sTB}\ns_mul_i32 s88, s89, {REC}\ns_add_u32 s88, s88, {KVB + lb*KVB_L}',
                f's_lshl_b32 s89, s89, 7\ns_add_u32 s89, s89, {KVF + lb*KVF_L}',
                f's_lshl_b32 s84, {sJ}, 6\ns_lshl2_add_u32 s84, {sC}, s84\ns_lshl_b32 s85, s84, 7\ns_add_u32 s85, s85, {KVF + lb*KVF_L - 1024}',
                f's_mul_i32 s84, s84, {REC}\ns_add_u32 s84, s84, {KVB + lb*KVB_L}',
                f's_cmp_ge_u32 {sC}, 2\ns_cselect_b32 s86, 15, 0\ns_cmp_ge_u32 {sC}, 1\ns_cselect_b32 s87, 0xf0, 0\ns_or_b32 s86, s86, s87\ns_mov_b32 s87, 0',
                f'v_lshrrev_b32 v15, 3, {vLANE}\nv_lshl_add_u32 v15, v15, 10, v12', f'v_mov_b32 v{QF+4}, {sNON}'] + \
               [f'v_mov_b32 v{QF+i}, {hx(ONES)}' for i in range(4)]

    def layerB(self, L):
        A = self.A; last = (L == self.nl - 1)
        self.stamp(f'L{L} pass1')
        if L == 1: self.bpop(0, 'qB')
        pre = None if L == 1 else self.pass2_pre(L)
        A('s_mov_b64 exec, 0xffff'); A(f'ds_write_b128 v15, {vr(QF,4)} offset:3072'); A('s_mov_b64 exec, -1')
        offs = [0, 1024, 2048, 3200]
        for k in range(4):
            a = AK + 8*k
            for i in range(4):
                if k < 2: A(f'v_pk_mul_f32 {vr(a+2*i,2)}, {vr(a+2*i,2)}, v[8:9] op_sel_hi:[1,0]')
                else: A(f'v_pk_mul_f32 {vr(a+2*i,2)}, {vr(a+2*i,2)}, {vr(AQ+8*(k-2)+2*i,2)}')
            for i in range(4): A(f'v_cvt_pk_bf16_f32 v{WF+4*k+i}, v{a+2*i}, v{a+2*i+1}')
            tst = A(f'buffer_store_dwordx4 {vr(WF+4*k,4)}, {vL16}, {S_WS}, s88 offen offset:{offs[k]} sc1')
        KW = [f'ds_write_b128 v12, {vr(WF+4*k,4)} offset:{offs[k]}' for k in range(4)]
        self.stamp(f'L{L} kvpub')
        MD, MF = AK, AV
        F = []
        if L == 1:
            A.wait(vm=self.tk['qB']); A('s_barrier')
            pre = self.colsum_q(L, QB, AK)
            cw = self.cs_write(AK, 14, 'v17', 5*1024)
            F = ['s_nop 0', '\n'.join(cw[:3]), '\n'.join(cw[3:])]
        F += [f's_lshr_b32 s92, {sW}, 1\ns_lshl_b32 s91, s92, 10\nv_add_u32 v17, s91, {vL16}',
              f's_lshr_b32 s92, {sW}, 1\ns_lshl_b32 s91, s92, 8\nv_add_u32 v18, s91, {vL16}',
              f'v_mov_b32 v16, 1024\nv_cndmask_b32_e64 v18, v18, v16, {sHALF}',
              f'v_add_u32 v14, {MISC}, v17\nv_add_u32 v15, {MISC}, v18',
              f'v_mul_f32 {vRSTD}, {hx(f2u(0.25*LOG2E))}, {vRSTD}\nv_mov_b32 v16, 0xff800000',
              f's_lshl_b32 s91, {sW}, 11\nv_add_u32 v13, s91, {vMISC}']
        for r in range(0, 16 if 'mask' not in self.p.get('x', '') else 0, 2):
            F.append('\n'.join(f'v_cndmask_b32_e64 v{MD+k}, v16, 0, s[{32+2*k}:{33+2*k}]' for k in (r, r+1)))
        for r in range(0, 16 if 'mask' not in self.p.get('x', '') else 0, 2):
            F.append('\n'.join(f'v_cndmask_b32_e64 v{MF+k}, 0, v16, s[{32+2*k}:{33+2*k}]' for k in (r, r+1)))
        def flag():
            A.wait(vm=tst)
            A(f'buffer_store_dword v{QF+4}, {vF4}, {S_WS}, s89 offen sc1')
        at = {12: ['s_barrier']}
        k0 = 17
        for t in range(4):
            r = self.treg(t)
            at[k0+3*t] = [f'ds_read_b128 {vr(r,4)}, v14 offset:{REC*t}']
            at[k0+1+3*t] = [f'ds_read_b128 {vr(r+4,4)}, v15 offset:{REC*t+2048}']
            at[k0+2+3*t] = [f'ds_read_b128 {vr(r+8,4)}, v15 offset:{REC*t+3200}']
        at.setdefault(self.p['flag_at'], []).append(flag)
        at[29] = [f's_cmp_ge_u32 {sC}, 2\ns_cselect_b32 s89, 0, 0x40000000\ns_cmp_ge_u32 {sC}, 1\ns_cselect_b32 s88, 0, 0x40000000']
        at[30] = ['v_add_u32 v16, s88, v17\nv_add_u32 v12, s88, v18']
        self.pass2(L, F, pre=pre, at=at, before=KW)
        self.stamp(f'L{L}.p2end')
        l1, lj = A.lab('att1'), A.lab('attj')
        A(f's_bitcmp1_b32 {sW}, 0'); A(f's_cbranch_scc1 {l1}')
        A.cond_begin(); self.attn(L, 0); A.cond_end()
        A(f's_branch {lj}')
        A(f'{l1}:')
        A.cond_begin(); self.attn(L, 1); A.cond_end()
        A(f'{lj}:')
        lo_b, hi_b = f2u(2.0**-64), f2u(2.0**64)
        for X in (1, 0):
            a = WF + 16*X
            lf, lr = A.lab('fb'), A.lab('fbr')
            A(f'v_subrev_u32 v13, {hx(lo_b)}, v{a+8}')
            A(f'v_cmp_le_u32 vcc, {hx(hi_b - lo_b)}, v13')
            if self.force_fb: A(f's_branch {lf}')
            elif not self.p.get('x'): A(f's_cbranch_vccnz {lf}')
            A(f'{lr}:')
            A.tail += [f'{lf}:'] + [f'v_mov_b32 v{XR+12+i}, v{QF+4*X+i}' for i in range(4)]
            A.tail += [f's_and_b32 s91, {sW}, 1'] + (['s_sub_u32 s91, 3, s91'] if X else [])
            A.tail += [f's_mul_i32 s90, s91, {REC}', 's_add_u32 s90, s90, s84',
                       f's_lshl2_add_u32 s91, {sC}, s91', 's_call_b64 s[92:93], L_fallback', 's_nop 7', 's_nop 7']
            A.tail += [f'v_mov_b32 v{a+i}, v{XR+16+i}' for i in range(9)] + [f's_branch {lr}']
            A(f'v_rcp_f32 v{a+8}, v{a+8}')
            for i in range(4): A(f'v_pk_mul_f32 {vr(a+2*i,2)}, {vr(a+2*i,2)}, {vr(a+8,2)} op_sel_hi:[1,0]')
            for i in range(4): A(f'v_cvt_pk_bf16_f32 v{AQ+8+4*X+i}, v{a+2*i}, v{a+2*i+1}')
            t = self.moded([f'buffer_store_dwordx4 {vr(AQ+8+4*X,4)}, {vL16}, {S_WS}, s{86+X} offen' + (' nt' if last and self.p.get('ont') else '')])
        self.stamp(f'L{L}.ost')
        A(f's_add_u32 {sEXP}, {sNON}, {8+L}'); A(f'v_mov_b32 v13, {sEXP}')
        self.op_addr(L)
        R1 = [] if L == 1 else self.wo_write(WOB, 1)
        W = [] if last else self.kv_write(KVA)
        if L == 1: self.pop(W, self.p.get('w1a', 6))
        return t, [f'buffer_store_dword v13, {vF4}, {S_WS}, s88 offen', f'buffer_store_dword v13, {vF4}, {S_WS}, s89 offen'], R1, W

    def attn(self, L, P):
        A = self.A; treg = self.treg
        a, b = (0, 3) if P == 0 else (1, 2)
        if P == 0:
            steps = [(0,0,'D'),(1,0,''),(1,1,''),(1,2,''),(1,3,'D')]
            far = [(1,-5,'F'),(0,-5,''),(0,-6,''),(0,-7,''),(0,-8,'F')]
        else:
            steps = [(0,0,''),(1,0,''),(0,1,'D'),(1,1,''),(1,2,'D')]
            far = [(1,-5,''),(1,-6,'F'),(0,-5,''),(0,-6,''),(0,-7,'F')]
        for t in range(1, 5): steps += [(0,-t,''),(1,-t,'')]
        steps += far
        nfar = 4 if P == 0 else 3
        S = [XR+96, XR+112]; PP = AQ; O = [WF, WF+16]; MD, MF = AK, AV
        tk = {}; tv = {}
        for H in range(2):
            for i in range(4*H, 4*H+4): A(f'v_pk_mul_f32 {vr(AQ+2*i,2)}, {vr(AQ+2*i,2)}, v[8:9] op_sel_hi:[1,0]')
            for i in range(4*H, 4*H+4): A(f'v_cvt_pk_bf16_f32 v{QF+i}, v{AQ+2*i}, v{AQ+2*i+1}')
            A(f'ds_write_b128 v13, {vr(QF+4*H,4)} offset:{QL-MISC+1024*H}')
        self.barrier()
        self.stamp(f'L{L} pass2', P)
        tq = A(f'ds_read_b128 {vr(QF,4)}, v14 offset:{QL-MISC+2048*a}')
        tq2 = A(f'ds_read_b128 {vr(QF+4,4)}, v14 offset:{QL-MISC+2048*b}')
        def ldg(t):
            r = treg(t)
            def f0(): A(f's_sub_u32 s90, s84, {-t*REC}'); tk[t] = A(f'buffer_load_dwordx4 {vr(r,4)}, v16, {S_WS}, s90 offen sc1')
            def f1(): A(f'buffer_load_dwordx4 {vr(r+4,4)}, v12, {S_WS}, s90 offen offset:2048 sc1')
            def f2(): tv[t] = A(f'buffer_load_dwordx4 {vr(r+8,4)}, v12, {S_WS}, s90 offen offset:3200 sc1')
            return [f0, f1, f2]
        pr = ['s_mov_b64 exec, 0xff', f'buffer_load_dword v13, {vL128}, {S_WS}, s85 offen sc1', 's_mov_b64 exec, -1']
        if self.p.get('probe_n', -1) < 0:
            for l in pr: tp = A(l)
        def qk(n):
            X, t, m = steps[n]
            if t < 0: assert t in tk
            A.wait(vm=tk.get(t), lg=tq2 if X else tq)
            self.mfma(S[n & 1], treg(t), QF + 4*X, {'': None, 'D': MD, 'F': MF}[m])
        seen = set()
        def pv(n, u):
            X, t, m = steps[n]
            if t < 0: assert t in tv
            A.wait(vm=tv.get(t))
            c = O[X] if X in seen else None
            seen.add(X)
            self.mfma(O[X], treg(t) + 4 + 4*u, PP + 4*u, c)
        qk(0)
        F = []; G = []
        for n in range(18):
            s = S[n & 1]
            if n in (2, 4, 5, 13): self.stamp(f'L{L} att{n}', P)
            if n == self.p.get('probe_n', -1):
                for l in pr: tp = A(l)
            if n == self.p['poll_n']:
                A.wait(vm=tp)
                if 'halo' not in self.p.get('x', ''): self.retry([f'v_cmp_ne_u32 vcc, {sNON}, v13'], pr, valid='s[86:87]', inline=self.p.get('inl', 3) & 1)
                for t in range(1, 5): F += ldg(-t)
            if n == 6:
                fl = []
                for t in range(5, 5 + nfar): fl += ldg(-t)
                def f00(f=fl[0]): A('v_add_u32 v16, s89, v17\nv_add_u32 v12, s89, v18'); f()
                F += [f00] + fl[1:]
            if L == 1:
                if n == 7: G += [self.wo_voff(14, 15)]; WB_ = self.wo_dma_run(S_OB, 'v14', 's85')
                k = self.p.get('wob', {10: 4, 13: 3, 14: 3, 15: 3, 16: 3}).get(n, 0)
                if k: F += WB_[:k] if not self.p.get('nowob') else []; WB_ = WB_[k:]
                if n == self.p.get('ct1', 11): F += [self.code_touch(15, vRSTD)]
            if L == 3 and P == 0 and n == 11:
                def ep():
                    A.cond_begin(); A(self.epoch()); A.cond_end()
                G.append(ep)
            if n == 12:
                G += [f's_add_u32 {sOO}, {sOO}, {sSLOW}']
                for X, tbl in enumerate((a, b)):
                    G += [f's_lshr_b32 s92, {sW}, 1\ns_lshl1_add_u32 s92, {sJ}, s92\ns_sub_i32 s91, {tbl}, {sW}\ns_lshl_b32 s91, s91, 5\ns_add_u32 s91, s91, s92\n'
                          f's_lshl_b32 s92, s91, 10\ns_add_u32 s{86+X}, s92, {sOO}\ns_lshl2_add_u32 s{88+X}, s91, {sOF}']
            for i in range(16):
                A(f'v_exp_f32 v{s+i}, v{s+i}')
                if i == 1 and n > 0: pv(n-1, 1)
                if i == 3 and n + 1 < 18: qk(n+1)
                if i >= 2 and i % 2 == 0: A(f'v_cvt_pk_bf16_f32 v{PP+(i-2)//2}, v{s+i-2}, v{s+i-1}')
                if i == 11: pv(n, 0)
                if i in self.p.get('fslots', (0, 5, 10)): self.pop(F, 1)
                if i == 15: self.pop(G, 1)
            A(f'v_cvt_pk_bf16_f32 v{PP+7}, v{s+14}, v{s+15}')
        pv(17, 1)
        self.stamp(f'L{L} att18', P)
        assert not F and not G and (L != 1 or not WB_)

    def fallback(self):
        T = []
        K, V0, V1, Q, O, S, PP, M = XR, XR+4, XR+8, XR+12, XR+16, XR+96, XR+32, XR+40
        T += ['L_fallback:', 's_nop 7', 's_nop 7', f'v_mov_b32 v{M}, 0xff800000']
        T += [f'v_mov_b32 v{O+i}, 0' for i in range(16)]
        for ps in range(2):
            T += ['s_mov_b32 s95, 0', 's_mov_b32 s94, s90', f'L_fb_loop{ps}:']
            T += [f'buffer_load_dwordx4 {vr(K,4)}, v17, {S_WS}, s94 offen sc1']
            if ps:
                T += [f'buffer_load_dwordx4 {vr(V0,4)}, v18, {S_WS}, s94 offen offset:2048 sc1',
                      f'buffer_load_dwordx4 {vr(V1,4)}, v18, {S_WS}, s94 offen offset:3200 sc1']
            T += ['s_waitcnt vmcnt(0)', 's_cmp_eq_u32 s95, 0', f's_cbranch_scc1 L_fb_d{ps}', 's_cmp_eq_u32 s95, 8', f's_cbranch_scc1 L_fb_f{ps}',
                  f'v_mfma_f32_32x32x16_bf16 {vr(S,16)}, {vr(K,4)}, {vr(Q,4)}, 0', f's_branch L_fb_j{ps}',
                  f'L_fb_d{ps}:', f'v_mfma_f32_32x32x16_bf16 {vr(S,16)}, {vr(K,4)}, {vr(Q,4)}, {vr(AK,16)}', f's_branch L_fb_j{ps}',
                  f'L_fb_f{ps}:', f'v_mfma_f32_32x32x16_bf16 {vr(S,16)}, {vr(K,4)}, {vr(Q,4)}, {vr(AV,16)}',
                  f'L_fb_j{ps}:']
            if ps == 0:
                T += [f'v_max3_f32 v{M}, v{M}, v{S+2*i}, v{S+2*i+1}' for i in range(8)]
            else:
                T += [f'v_sub_f32 v{S+i}, v{S+i}, v{M}' for i in range(16)]
                T += [f'v_exp_f32 v{S+i}, v{S+i}' for i in range(16)]
                T += [f'v_cvt_pk_bf16_f32 v{PP+i}, v{S+2*i}, v{S+2*i+1}' for i in range(8)]
                T += [f'v_mfma_f32_32x32x16_bf16 {vr(O,16)}, {vr(V0,4)}, {vr(PP,4)}, {vr(O,16)}',
                      f'v_mfma_f32_32x32x16_bf16 {vr(O,16)}, {vr(V1,4)}, {vr(PP+4,4)}, {vr(O,16)}', 's_nop 7', 's_nop 7']
            T += [f's_sub_u32 s94, s94, {REC}', 's_add_u32 s95, s95, 1', 's_cmp_gt_u32 s95, s91', f's_cbranch_scc1 L_fb_x{ps}',
                  's_cmp_le_u32 s95, 8', f's_cbranch_scc1 L_fb_loop{ps}', f'L_fb_x{ps}:']
            if ps == 0:
                T += [f'v_mov_b32 v{M+1}, v{M}', f'v_permlane32_swap_b32 v{M}, v{M+1}', f'v_max_f32 v{M}, v{M}, v{M+1}']
        T += ['s_setpc_b64 s[92:93]']
        return T

    def build(self):
        A = self.A
        if 'chore' in self.p.get('x', ''):
            self.q_write = lambda a: []; self.wo_write = lambda a, h: []; self.kv_write = lambda a: ['s_nop 0'] * 16
        hdr = open('interleave_layers__linear_attn_block__sliding_block__prompt.s.ref').read().split('\n')
        hdr = [l for l in hdr if l.startswith(';') and '@launch' not in l]
        for l in hdr: A.L.append(l)
        A(f'; @launch grid=(256,1,1) block=(256,1,1) lds={LDS_BYTES}')
        A('.amdgcn_target "amdgcn-amd-amdhsa--gfx950"'); A('.text'); A(f'.globl {KN}'); A('.p2align 8'); A(f'.type {KN},@function'); A(f'{KN}:')
        self.prologue()
        for L in range(self.nl):
            self.curL = L
            if L > 0: self.pass1(L, *nx)
            r = self.layerA(L) if L % 2 == 0 else self.layerB(L)
            nx = self.outproj(L, *r)
        if self.nl < 4: A(self.epoch())
        if self.probe:
            A.wait(vm='all')
            if self.probe == 'none': A('s_mov_b32 s79, 0')
            else: self.stamp('end')
            A('s_lshl_b32 s79, s79, 2'); A('s_add_u32 s79, s79, 10000')
            A('L_probe:'); A('s_memrealtime s[100:101]'); A('s_waitcnt lgkmcnt(0)'); A('s_sub_u32 s100, s100, s99'); A('s_cmp_lt_u32 s100, s79'); A('s_cbranch_scc1 L_probe')
        if self.debug:
            A.wait(vm='all'); self.stamp('end'); A('s_waitcnt lgkmcnt(0)'); self.stamp('end2')
            A(f's_lshl_b32 s91, {sTB}, 4'); A(f's_add_u32 s91, s91, {sJ}'); A('s_lshl_b32 s91, s91, 8'); A(f's_add_u32 s91, s91, {hx(STAMP)}')
            A(f'v_writelane_b32 {vDBG}, {sSPIN}, 62'); A(f'v_writelane_b32 {vDBG}, {sMODE}, 63')
            A(f'v_lshlrev_b32 v12, 2, {vLANE}'); A(f'buffer_store_dword {vDBG}, v12, {S_WS}, s91 offen')
        A('L_end:')
        A('s_endpgm')
        for l in A.tail: A.L.append(l)
        if self.nl > 1:
            for l in self.fallback(): A.L.append(l)
        A('L_codeend:')
        A('.fill (65536+64-(L_codeend-L_pc))/4, 4, 0xbf810000')
        A('.section .rodata,"a"'); A('.p2align 6'); A(f'.amdhsa_kernel {KN}')
        for d in ['next_free_vgpr 512', 'next_free_sgpr 102', 'accum_offset 256', 'group_segment_fixed_size 0', 'kernarg_size 72',
                  'user_sgpr_count 2', 'user_sgpr_kernarg_segment_ptr 1', 'system_sgpr_workgroup_id_x 1']:
            A('.amdhsa_' + d)
        A('.end_amdhsa_kernel')
        t = A.text()
        if self.p.get('align', 1): t, self.nfix, self.nmiss = align_runs(t, 'L_first', self.p.get('minrun', 5))
        return t

if __name__ == '__main__':
    import argparse
    ap = argparse.ArgumentParser()
    ap.add_argument('-o', default='interleave_layers__linear_attn_block__sliding_block__prompt.s')
    ap.add_argument('--nl', type=int, default=4); ap.add_argument('--debug', action='store_true')
    ap.add_argument('--probe', default=None); ap.add_argument('--slow', action='store_true'); ap.add_argument('--fb', action='store_true')
    a = ap.parse_args()
    g = Gen(a.nl, a.debug, a.slow, a.fb, a.probe)
    t = g.build()
    open(a.o, 'w').write(t)
    print('lines', t.count('\n'), 'nops inserted', g.A.nops, 'aligned', g.nfix, 'missed', g.nmiss)
    if a.debug: open(a.o + '.names', 'w').write('\n'.join(g.names))
```

```python
import re

REG = re.compile(r'^(-?)(abs\()?([vas])(?:(\d+)|\[(\d+):(\d+)\])\)?$')
TRANS = ('v_exp_', 'v_log_', 'v_rcp_', 'v_rsq_', 'v_sqrt_', 'v_sin_', 'v_cos_')

def regs_of(op):
    op = op.strip()
    if op == 'vcc': return {('s', 'vcc')}
    if op in ('vcc_lo', 'vcc_hi'): return {('s', 'vcc')}
    if op in ('exec', 'exec_lo', 'exec_hi'): return {('s', 'exec')}
    if op == 'm0': return {('s', 'm0')}
    m = REG.match(op)
    if not m: return set()
    k = m.group(3)
    if m.group(4) is not None: return {(k, int(m.group(4)))}
    return {(k, i) for i in range(int(m.group(5)), int(m.group(6)) + 1)}

class Ins:
    def __init__(self, text):
        self.text = text
        t = text.split(';')[0].strip()
        self.label = None; self.dir = False
        self.kind = 'other'; self.wr = set(); self.rd = set()
        self.A = self.B = self.C = set(); self.target = None; self.states = 1
        self.mn = ''
        if not t: self.kind = 'blank'; self.states = 0; return
        if t.endswith(':'): self.kind = 'label'; self.label = t[:-1]; self.states = 0; return
        if t.startswith('.'): self.kind = 'dir'; self.states = 0; return
        parts = t.split(None, 1)
        mn = self.mn = parts[0]
        rest = parts[1] if len(parts) > 1 else ''
        ops = [o.strip() for o in re.split(r',(?![^\[\(]*[\]\)])', rest)] if rest else []
        mods = ''
        if ops:
            last = ops[-1].split(None, 1)
            ops[-1] = last[0]
            mods = last[1] if len(last) > 1 else ''
        self.ops = ops; self.mods = mods
        R = [regs_of(o) for o in ops]
        U = lambda l: set().union(*l) if l else set()
        if mn == 's_nop': self.kind = 'nop'; self.states = int(ops[0], 0) + 1
        elif mn.startswith('v_mfma'):
            self.kind = 'mfma'; self.wr = R[0]; self.A, self.B, self.C = R[1], R[2], R[3]; self.rd = U(R[1:4])
            self.passes = 8 if '32x32' in mn else 4
        elif mn.startswith('v_'):
            self.kind = 'valu'
            self.trans = mn.startswith(TRANS)
            self.dot = mn.startswith('v_dot')
            if mn.startswith('v_permlane') :
                self.wr = R[0] | R[1]; self.rd = R[0] | R[1]
            elif re.match(r'v_(add|sub|subrev|addc|subb|subbrev)_co_', mn):
                self.wr = R[0] | R[1]; self.rd = U(R[2:])
            else:
                self.wr = R[0]; self.rd = U(R[1:])
                if mn.startswith(('v_fmac', 'v_dot2c', 'v_writelane', 'v_pk_fmac')): self.rd = self.rd | R[0]
                if mn.startswith('v_cmpx'): self.wr = self.wr | {('s', 'exec')}
            self.dpp = ('quad_perm' in mods or 'row_' in mods or 'dpp' in mn)
        elif mn.startswith('ds_'):
            self.kind = 'ds'
            if mn.startswith(('ds_read', 'ds_bpermute', 'ds_permute', 'ds_swizzle')): self.wr = R[0]; self.rd = U(R[1:])
            else: self.rd = U(R)
        elif mn.startswith(('buffer_', 'global_')):
            self.kind = 'vmem'
            self.lds = bool(re.search(r'\blds\b', mods))
            if '_load' in mn and not self.lds: self.wr = R[0]; self.rd = U(R[1:])
            else: self.rd = U(R)
            self.wide = None
            if '_store_dwordx3' in mn or '_store_dwordx4' in mn:
                self.wide = R[0] if mn.startswith('buffer_') else R[1]
        elif mn.startswith('s_'):
            self.kind = 'salu'
            if mn.startswith(('s_cbranch', 's_branch')): self.kind = 'branch'; self.target = ops[0]
            elif mn.startswith(('s_cmp', 's_bitcmp', 's_waitcnt', 's_barrier', 's_sleep', 's_setprio', 's_endpgm', 's_setpc')): self.rd = U(R)
            else: self.wr = R[0] if R else set(); self.rd = U(R[1:])

def need(p, c):
    n = 0
    vw = {r for r in p.wr if r[0] in 'va'}
    sw = {r for r in p.wr if r[0] == 's'}
    if p.kind == 'valu':
        if c.kind == 'mfma' and vw & c.rd: n = max(n, 3 if p.dot else 2)
        if c.kind == 'valu':
            if p.trans and not c.trans and vw & c.rd: n = max(n, 1)
            if p.trans and c.trans and vw & c.rd: n = max(n, 1)
            if c.mn.startswith('v_permlane') and vw & c.rd: n = max(n, 2)
            if c.mn.startswith(('v_readlane', 'v_readfirstlane')) and vw & c.rd: n = max(n, 1)
            if c.dpp and vw & c.rd: n = max(n, 2)
            if sw & c.rd:
                n = max(n, 4 if c.mn.startswith(('v_readlane', 'v_writelane')) else 2)
            if ('s', 'exec') in sw: n = max(n, 5)
            if p.dot and vw & (c.rd | c.wr) and not (c.mn == p.mn and not (vw & (regs_of(c.ops[1]) | regs_of(c.ops[2])))): n = max(n, 3)
        if c.kind in ('vmem', 'ds') and p.dot and vw & c.rd: n = max(n, 3)
        if c.kind in ('vmem', 'ds') and p.trans and vw & c.rd: n = max(n, 1)
        if c.kind == 'vmem' and sw & c.rd: n = max(n, 5)
        if c.kind == 'mfma' and ('s', 'exec') in sw: n = max(n, 4)
        if c.kind in ('salu', 'branch') and sw & c.rd: n = max(n, 1)
    if p.kind == 'mfma':
        big = p.passes == 8
        if c.kind == 'mfma':
            if p.wr & (c.A | c.B): n = max(n, 12 if big else 8)
            if p.wr & c.C and not (p.wr == c.C and p.passes == c.passes): n = max(n, 10 if big else 6)
            if p.wr & c.wr and not (p.wr == c.C and p.passes == c.passes): n = max(n, 10 if big else 6)
        elif c.kind in ('valu', 'vmem', 'ds'):
            if p.wr & (c.rd | c.wr): n = max(n, 12 if big else 8)
            if c.kind == 'valu' and p.C & c.wr: n = max(n, 7 if big else 3)
            if c.kind in ('vmem', 'ds') and p.C & c.wr: n = max(n, 7 if big else 3)
    if p.kind == 'vmem' and getattr(p, 'wide', None):
        if p.wide & c.wr: n = max(n, 2)
    if p.kind == 'salu' and ('s', 'm0') in p.wr:
        if c.kind == 'vmem' and c.lds: n = max(n, 1)
        if c.kind == 'valu' and ('s', 'm0') in c.rd: n = max(n, 1)
    return n

WIN = 14
def fix_hazards(lines):
    ins = [Ins(l) for l in lines]
    changed = True
    nins = 0
    while changed:
        changed = False
        labels = {x.label: i for i, x in enumerate(ins) if x.kind == 'label'}
        preds = {}
        for i, x in enumerate(ins):
            if x.kind == 'branch' and x.target in labels: preds.setdefault(labels[x.target], []).append(i)
        i = 0
        while i < len(ins):
            c = ins[i]
            if c.states == 0 or c.kind == 'nop': i += 1; continue
            worst = 0
            stack = [(i - 1, 0)]
            seen = set()
            while stack:
                k, d = stack.pop()
                while k >= 0 and d < WIN:
                    if (k, d) in seen: break
                    seen.add((k, d))
                    p = ins[k]
                    if p.kind == 'label':
                        for b in preds.get(k, []): stack.append((b, d))
                        kk = k - 1
                        while kk >= 0 and ins[kk].states == 0 and ins[kk].kind != 'label': kk -= 1
                        if kk >= 0 and ins[kk].mn in ('s_branch', 's_endpgm', 's_setpc_b64'): break
                        k -= 1; continue
                    if p.states:
                        r = need(p, c) - d
                        if r > worst: worst = r
                        d += p.states
                    k -= 1
            if worst > 0:
                ins.insert(i, Ins(f's_nop {worst-1}'))
                nins += 1
                changed = True
                break_out = True
                labels = {x.label: ii for ii, x in enumerate(ins) if x.kind == 'label'}
                preds = {}
                for ii, x in enumerate(ins):
                    if x.kind == 'branch' and x.target in labels: preds.setdefault(labels[x.target], []).append(ii)
                i += 1
            i += 1
    return [x.text for x in ins], nins

class Asm:
    def __init__(self):
        self.L = []
        self.vmops = []; self.lgops = []
        self.vm_done = 0; self.lg_done = 0
        self.uid = 0
        self.stack = [0]; self.saved = []; self.nreg = 0
        self.tail = []
    def __call__(self, s):
        for line in s.split('\n'):
            line = line.strip()
            if not line: continue
            self.L.append(line)
            mn = line.split()[0]
            if mn.startswith(('buffer_', 'global_')): self.vmops.append(self.stack[-1])
            elif mn.startswith('ds_'): self.lgops.append(self.stack[-1])
        return (len(self.vmops), len(self.lgops))
    def tok(self): return (len(self.vmops), len(self.lgops))
    def lab(self, base):
        self.uid += 1
        return f'L_{base}_{self.uid}'
    def cond_begin(self):
        self.nreg += 1; self.stack.append(self.nreg); self.saved.append((self.vm_done, self.lg_done))
    def cond_end(self):
        self.stack.pop(); self.vm_done, self.lg_done = self.saved.pop()
    def _cnt(self, ops, t):
        return sum(1 for r in ops[t:] if r in self.stack)
    def wait(self, vm=None, lg=None):
        parts = []
        if vm is not None:
            t = len(self.vmops) if vm == 'all' else vm[0]
            if vm == 'all' or t > self.vm_done:
                n = self._cnt(self.vmops, t)
                parts.append(f'vmcnt({min(n, 63)})')
                self.vm_done = max(self.vm_done, t)
        if lg is not None:
            t = len(self.lgops) if lg == 'all' else lg[1]
            if lg == 'all' or t > self.lg_done:
                n = self._cnt(self.lgops, t)
                parts.append(f'lgkmcnt({min(n, 15)})')
                self.lg_done = max(self.lg_done, t)
        if parts: self.L.append('s_waitcnt ' + ' '.join(parts))
    def text(self):
        out, n = fix_hazards(self.L)
        self.nops = n
        return '\n'.join(('' if (l.endswith(':') or l.startswith(('.', ';'))) else '    ') + l for l in out) + '\n'

import subprocess, os, tempfile
def sizes_of(text):
    d = tempfile.mkdtemp()
    open(d + '/a.s', 'w').write(text)
    subprocess.run(['clang', '-x', 'assembler', '-target', 'amdgcn-amd-amdhsa', '-mcpu=gfx950', '-c', d + '/a.s', '-o', d + '/a.o'], check=True)
    out = subprocess.run(['llvm-objdump', '-d', '--mcpu=gfx950', d + '/a.o'], capture_output=True, text=True).stdout
    return [len(l.split('//')[1].split(':')[1].split()) * 4 for l in out.split('\n') if '//' in l]

E64 = ('v_mov_b32', 'v_add_f32', 'v_mul_f32', 'v_max_f32', 'v_sub_f32', 'v_exp_f32', 'v_rcp_f32', 'v_add_u32', 'v_and_b32', 'v_or_b32',
       'v_xor_b32', 'v_lshlrev_b32', 'v_lshrrev_b32', 'v_cmp_ne_u32', 'v_rsq_f32')
def align_runs(text, start_label, minrun=5, back=12, aligned=False):
    lines = text.split('\n')
    ins = [Ins(l.strip()) for l in lines]
    idx = [i for i, x in enumerate(ins) if x.kind not in ('blank', 'label', 'dir')]
    sz = sizes_of(text.replace('.p2align 12', ''))[:len(idx)]
    first = next(k for k, i in enumerate(idx) if i > next(n for n, x in enumerate(ins) if x.label == start_label))
    addr = 0 if aligned else sum(sz[:first]); k = first; fixed = missed = 0; last_run_end = first
    fast = lambda k: sz[k] == 8 and ins[idx[k]].kind in ('valu', 'ds', 'salu') and not getattr(ins[idx[k]], 'trans', False)
    while k < len(idx):
        r = k
        while r < len(idx) and fast(r): r += 1
        if r - k >= minrun:
            if addr % 8:
                done = False
                for b in range(k - 1, max(last_run_end, k - back) - 1, -1):
                    x = ins[idx[b]]
                    if sz[b] != 4: continue
                    if x.kind == 'nop' and x.states >= 2:
                        lines[idx[b]] = f'    s_nop 0\n    s_nop {x.states - 2}'; done = True
                    elif x.mn in E64:
                        lines[idx[b]] = lines[idx[b]].replace(x.mn, x.mn + '_e64', 1); done = True
                    if done: break
                if not done and r - k >= 10:
                    lines[idx[k]] = '    s_nop 0\n' + lines[idx[k]]; done = True
                if done: addr += 4; fixed += 1
                else: missed += 1
            last_run_end = r
        if r == k: r = k + 1
        addr += sum(sz[k:r]); k = r
    return '\n'.join(lines), fixed, missed

def insert_pads(text, start_label, end_label, back_label, nchain, spacing=4096):
    lines = text.split('\n')
    ins = [Ins(l.strip()) for l in lines]
    lab = lambda n: next(i for i, x in enumerate(ins) if x.label == n)
    s, e = lab(start_label), lab(end_label)
    idx = [i for i, x in enumerate(ins) if x.kind not in ('blank', 'label', 'dir')]
    sz = sizes_of(text.replace('.p2align 12', ''))[:len(idx)]
    addr = 0; nxt = spacing; pads = []
    for k, i in enumerate(idx):
        if i < s: continue
        if i > e: break
        addr += sz[k]
        if addr >= nxt and ins[i].mn != 's_getpc_b64':
            pads.append(i); addr += 4; nxt += spacing
    per = -(-len(pads) // nchain)
    for n, i in enumerate(pads):
        tgt = f'L_pad{n+1}' if n + 1 < len(pads) and (n + 1) % per else back_label
        lines[i] += f'\nL_pad{n}:\n    s_cbranch_execz {tgt}'
    out = '\n'.join(lines)
    for c in range(nchain): out = out.replace(f'L_PADHEAD{c}', f'L_pad{c*per}' if c*per < len(pads) else back_label)
    return out, len(pads)
```

```python
import sys, struct
from asmlib import Asm, align_runs, insert_pads

KN = 'interleave_layers__linear_attn_block__sliding_block__prompt_kernel'

EPOCH = 0
ST0   = 0x50000
XF    = 0x2000
OF    = 0x4000
KVF   = 0x10000
STAT  = 0x80000
PART  = 0x100000
XB    = 0x400000
OB    = 0x600000
KVB   = 0x800000
PAIR  = 0x1400000
RLB   = 0x1200000
RLO   = 0x1380000
REC   = 4352
SLOW  = 0x2800000
STAMP = 0xF000000
WS_BYTES = 0x10000000
WK, WV, WQ, WO, MISC = 0, 32768, 65536, 98304, 131072
QL  = MISC + 4 * REC
CST = QL + 8192
RSB = CST + 6144
TOT = MISC + 12288
ZOF = TOT + 2048
LDS_BYTES = 163840
S_X0, S_WA, S_WB, S_OA, S_OB, S_WS, S_OUT = [f's[{4*i+4}:{4*i+7}]' for i in range(7)]
sW, sC, sJ, sTB, sNON, sEXP, sXO, sOO, sST, sXF, sOF, sROT, sSLOW, sXCC = [f's{64+i}' for i in range(14)]
T = [f's{80+i}' for i in range(16)]
sCH = ['s0', 's1', 's2', 's3']
S_XB = S_X0
sXW, sSW, sXFW, sOFR = 's80', 's81', 's82', 's83'
sOR = sROT
sMODE = sSLOW
sW11 = sXCC
S_PL = 's[32:35]'
sGOF = [f's{36+i}' for i in range(8)]; sPST, sOWA, sOFA = 's44', 's45', 's46'
sW12 = 's47'; sRA = ['s88', 's90']
sWO48 = [f's{48+i}' for i in range(4)]; sXC = [f's{52+i}' for i in range(4)]
sO16 = [f's{56+i}' for i in range(4)]; sRL = [f's{60+i}' for i in range(4)]
sREC, sKF, sHF, sINV = 's48', 's49', 's50', ['s51', 's54']; sVAL = 's[52:53]'; sRO = 's55'; sP = 's56'
sHALF = 's[96:97]'; sSPIN = 's98'; sSTI = 's99'
SPIN_LIMIT = 400000
vLANE, vL16, vTR0, vTR1, vBK0, vBK1, vF4, vDBG, vRSTD, vL128, vRSR, vMISC = [f'v{i}' for i in range(12)]
vBKO = 'v19'
MU = 20; QF = 24; WF = 32; RES = 64; AK = 80; AV = 96; AQ = 112; XR = 128

def vr(a, n=1): return f'v{a}' if n == 1 else f'v[{a}:{a+n-1}]'
def ar(a, n=1): return f'a{a}' if n == 1 else f'a[{a}:{a+n-1}]'
def f2u(x): return struct.unpack('<I', struct.pack('<f', x))[0]
def hx(x): return f'0x{x & 0xffffffff:x}'
LOG2E = 1.4426950408889634; LN2 = 0.6931471805599453
ONES = 0x3f803f80

KVA, QA, QB, WOA, KVB_A = 0, 64, 96, 128, 192
WOB = KVA

class Gen:
    def __init__(self, nlayers=4, debug=False, force_slow=False, force_fb=False, probe=None, **kw):
        self.probe = probe
        self.A = Asm(); self.nl = nlayers; self.debug = debug
        self.force_slow = force_slow; self.force_fb = force_fb
        self.names = []; self.light = False
        self.tk = {}; self.B = []; self.open = set()
        self.p = dict(mw=5, w1=1, b0=7, depth=8, stat_at=3, flag_at=18, poll_n=2)
        self.p.update(kw)

    def stamp(self, name, again=0):
        if self.probe == name:
            self.A('s_memrealtime s[100:101]'); self.A.wait(lg='all'); self.A('s_sub_u32 s79, s100, s99')
        if not self.debug: return
        if self.p.get('only') and name not in self.p['only'] and name not in ('start', 'end', 'end2'): return
        if name[2:3] == '.' and int(name[1]) not in self.p.get('fine', ()): return
        if self.p.get('fine') and name[0] == 'L' and int(name[1]) not in self.p['fine'] and 'xpoll' not in name: return
        A = self.A
        if not again: self.names.append(name)
        k = self.names.index(name)
        op = 's_memtime' if self.debug == 2 else 's_memrealtime'
        r = [100, 78]
        if self.light:
            A(f'v_writelane_b32 {vDBG}, s{r[(k-1)&1]}, {k-1}')
            A(f'{op} s[{r[k&1]}:{r[k&1]+1}]')
        else:
            A(f'{op} s[100:101]'); A('s_waitcnt lgkmcnt(0)')
            A(f'v_writelane_b32 {vDBG}, s100, {k}')
            if name == 'start': A('s_mov_b32 s78, s100'); self.light = True

    def mfma(self, d, a, b, c):
        c = '0' if c is None else vr(c, 16)
        self.A(f'v_mfma_f32_32x32x16_bf16 {vr(d,16)}, {vr(a,4)}, {vr(b,4)}, {c}')

    def csum(self, d, b, first, acc=False):
        self.A(f'v_mfma_f32_16x16x32_bf16 {vr(d,4)}, {vr(QF,4)}, {ar(b,4) if acc else vr(b,4)}, {"0" if first else vr(d,4)}')
    def selector(self):
        m = sum(1 << l for l in range(32) if ((l >> 4) & 1) == ((l >> 2) & 1))
        return [f's_mov_b32 s92, {hx(m)}\ns_mov_b32 s93, s92\nv_mov_b32 v{QF+1}, {hx(ONES)}\nv_cndmask_b32_e64 v{QF}, 0, v{QF+1}, s[92:93]'] + \
               [f'v_mov_b32 v{QF+i}, v{QF}' for i in range(1, 4)]

    def tr(self, dst, addr, off, d=256, acc=False):
        r = ar if acc else vr
        self.A(f'ds_read_b64_tr_b16 {r(dst,2)}, {addr} offset:{off}')
        return self.A(f'ds_read_b64_tr_b16 {r(dst+2,2)}, {addr} offset:{off+d}')
    def wrd(self, L, dst, addr, off):
        if L < 1: return self.tr(dst, addr, off)
        return self.A(f'ds_read_b128 {vr(dst,4)}, {addr} offset:{off}')

    def pop(self, Q, n):
        for _ in range(n):
            if not Q: return
            x = Q.pop(0)
            if callable(x): x()
            else: self.A(x)

    def capture(self, f):
        A = self.A; n = len(A.L); v, l = len(A.vmops), len(A.lgops); r = f()
        out = A.L[n:]; del A.L[n:]; assert (v, l) == (len(A.vmops), len(A.lgops))
        return '\n'.join(out), r

    def popb(self, Q, credit):
        while Q and credit > 0:
            n = len(self.A.L); self.pop(Q, 1); credit -= len(self.A.L) - n
        return min(credit, 0)

    def moded(self, lines, slow=None, through=False):
        A = self.A
        if through:
            for l in lines: t = A(l + ' sc1')
            return t
        ls, lb = A.lab('slow'), A.lab('back')
        A(f's_cmp_lg_u32 {sMODE}, 0'); A(f's_cbranch_scc1 {ls}')
        for l in lines: t = A(l)
        A(f'{lb}:')
        A.tail += [f'{ls}:'] + [l + ' sc1' if l.startswith('buffer_') else l for l in (slow or lines)] + [f's_branch {lb}']
        return t

    def flag(self, tok, stores):
        A = self.A
        A('s_mov_b64 exec, 1')
        n = len(A.L); A.wait(vm=tok); w = A.L[n:]; del A.L[n:]
        self.moded(w + stores, ['s_waitcnt vmcnt(0)'] + stores)
        A('s_mov_b64 exec, -1')

    def probe_(self, soff, vtmp): return self.A(f'buffer_load_dword v{vtmp}, {vF4}, {S_WS}, {soff} offen sc1')
    def spin(self, soff, vtmp):
        A = self.A; l = A.lab('poll')
        A(f'{l}:')
        A(f's_add_u32 {sSPIN}, {sSPIN}, 1'); A(f's_cmp_lt_u32 {sSPIN}, {SPIN_LIMIT}'); A('s_cselect_b64 s[94:95], -1, 0')
        A.wait(vm='all')
        A(f'v_cmp_ne_u32 vcc, {sEXP}, v{vtmp}' if {12: 'opoll', 16: 'xpoll'}[vtmp] not in self.p.get('x', '') else f'v_cmp_ne_u32 vcc, v{vtmp}, v{vtmp}')
        self.probe_(soff, vtmp)
        A('s_and_b64 vcc, vcc, s[94:95]')
        A(f's_cbranch_scc1 {l}')

    def retry(self, check, reload, valid=None, inline=False):
        A = self.A; lo, lb = A.lab('ro'), A.lab('rb')
        if inline:
            A(f'{lo}:')
            for l in check: A(l)
            if valid: A(f's_and_b64 vcc, vcc, {valid}')
            A(f's_cbranch_vccz {lb}')
            A.L += reload + [f's_add_u32 {sSPIN}, {sSPIN}, 1', f's_cmp_lt_u32 {sSPIN}, {SPIN_LIMIT}', 's_waitcnt vmcnt(0)', f's_cbranch_scc1 {lo}']
            A(f'{lb}:')
            return
        for l in check: A(l)
        if valid: A(f's_and_b64 vcc, vcc, {valid}')
        A(f's_cbranch_vccnz {lo}')
        A(f'{lb}:')
        A.tail += [f'{lo}:'] + reload + [f's_add_u32 {sSPIN}, {sSPIN}, 1', f's_cmp_lt_u32 {sSPIN}, {SPIN_LIMIT}',
                   f's_cselect_b64 s[94:95], {valid if valid else -1}, 0', 's_waitcnt vmcnt(0)'] + check + \
                  ['s_and_b64 vcc, vcc, s[94:95]', f's_cbranch_scc1 {lo}', f's_branch {lb}']

    def walk(self):
        A = self.A
        A('s_mov_b64 exec, 0')
        for w in range(3): A(f's_cmp_eq_u32 {sW}, {w}'); A(f's_cbranch_scc1 L_wback ; L_PADHEAD{w}')
        A('s_branch L_wback ; L_PADHEAD3')
        A('.p2align 12')
        A('L_wback:')
        A('s_mov_b64 exec, -1')
        for r in (11, 15, 19): A(f's_mov_b32 s{r}, 0x20000')

    def epoch(self):
        l = self.A.lab('ep')
        return (f's_or_b32 s91, {sTB}, {sJ}\ns_cbranch_scc1 {l}\nv_mov_b32 v{QF+7}, {sNON}\n'
                f'buffer_store_dword v{QF+7}, {vF4}, {S_WS}, 0 offen offset:{EPOCH} sc1\n{l}:')

    def code_touch(self, t, dst):
        l = self.A.lab('pc')
        return (f's_getpc_b64 s[92:93]\n{l}:\ns_sub_u32 s92, s92, {l}-L_pc\ns_subb_u32 s93, s93, 0\n'
                f's_and_b32 s91, {sC}, 1\ns_lshl4_add_u32 s91, s91, {sJ}\ns_lshl2_add_u32 s91, s91, {sW}\ns_lshl_b32 s91, s91, 9\n'
                f'v_lshl_add_u32 v{t}, {vLANE}, 3, s91\nglobal_load_dword {dst}, v{t}, s[92:93]')

    def barrier(self):
        self.A.wait(lg='all'); self.A('s_barrier')

    def bk_off(self, i): return 8192*(i >> 1) + 1024*(i & 1)
    def q_write(self, abase): return [f'ds_write_b128 {vBK1}, {ar(abase+4*i,4)} offset:{WQ-65536+self.bk_off(i)}' for i in range(8)]
    def kv_off(self, n): return (WK if n < 8 else WV) + self.bk_off(n & 7)
    def kv_save(self, abase): return [f'ds_read_b128 {ar(abase+4*n,4)}, {vBK0} offset:{self.kv_off(n)}' for n in range(16)]
    def q_save(self, abase): return [f'ds_read_b128 {ar(abase+4*i,4)}, {vBK1} offset:{WQ-65536+self.bk_off(i)}' for i in range(8)]
    def kv_write(self, abase): return [f'ds_write_b128 {vBK0}, {ar(abase+4*n,4)} offset:{self.kv_off(n)}' for n in range(16)]
    def w_dma(self, srd, g, col, reg):
        return [f's_add_u32 m0, {sW11}, {reg+8192*g+1024*i}\n'
                f's_add_u32 s93, {sWO48[g]}, {col+i*16*3072}\nbuffer_load_dwordx4 v18, {srd}, s93 offen lds' for i in range(2)]
    def rl_dma(self, g, b, reg):
        pre = f's_add_u32 m0, {sW11}, {reg+8192*g}\ns_add_u32 s93, {sRL[g]}, {32768*b}\n'
        return [pre + f'buffer_load_dwordx4 {vBK0}, {S_WS}, s93 offen sc1 lds\nbuffer_load_dwordx4 {vBK0}, {S_WS}, s93 offen offset:1024 sc1 lds']
    def rl_setup(self):
        A = self.A
        A(f's_cmp_ge_u32 {sC}, 12\ns_cselect_b64 vcc, -1, 0\ns_cselect_b64 s[12:13], s[20:21], s[12:13]\ns_cselect_b32 s14, s22, s14')
        A(f's_cselect_b32 s92, 1024, 0\ns_cselect_b32 s93, 0, 3072\ns_or_b32 s93, s93, s92')
        A(f'v_lshrrev_b32 v{RES}, 2, {vLANE}\nv_and_b32 v{RES+1}, 3, {vLANE}\nv_lshlrev_b32 v{RES+1}, 4, v{RES+1}\nv_mad_u32_u24 v{RES+4}, v{RES}, s93, v{RES+1}')
        A(f's_and_b32 s92, {sC}, 3\ns_lshl2_add_u32 s91, s92, {sW}\ns_lshl_b32 s91, s91, 5\ns_mul_i32 s91, s91, s93\ns_lshl_b32 {sRA[1]}, s93, 4')
        A(f's_lshr_b32 s93, {sC}, 2\ns_add_u32 s93, s93, 1\ns_cmp_ge_u32 s93, 3\ns_cselect_b32 s93, 0, s93\ns_lshl4_add_u32 s93, s93, {sJ}\ns_lshl_b32 s93, s93, 6')
        A(f's_add_u32 {sRA[0]}, s91, s93\ns_add_u32 {sRA[1]}, {sRA[1]}, {sRA[0]}')
        A(f's_mul_i32 s91, {sJ}, 12\ns_add_u32 s91, s91, {sC}\ns_lshl_b32 s91, s91, 13\ns_add_u32 s91, s91, {RLB}\nv_add_u32 v{RES+5}, s91, {vBK0}')
        A(f's_lshr_b32 s91, {sJ}, 1\ns_lshl2_add_u32 s91, s91, s92\ns_lshl2_add_u32 s91, s91, {sW}\ns_and_b32 s92, {sJ}, 1\ns_lshl1_add_u32 s91, s91, s92\n'
          f's_lshl_b32 s91, s91, 11\ns_add_u32 s91, s91, {RLO}\nv_add_u32 v{RES}, s91, {vL16}\nv_cndmask_b32 v{RES+5}, v{RES+5}, v{RES}, vcc')
        A(f'v_lshrrev_b32 v{RES}, 4, {vLANE}\nv_bfe_u32 v{RES+1}, {vLANE}, 2, 2\nv_lshl_add_u32 v{RES}, v{RES}, 3, v{RES+1}\n'
          f'v_and_b32 v{RES+1}, 3, {vLANE}\nv_lshl_add_u32 v{RES}, v{RES}, 3, v{RES+1}\nv_lshlrev_b32 v{RES}, 3, v{RES}\n'
          f'v_cndmask_b32 v{RES}, {vTR0}, v{RES}, vcc\ns_add_u32 s91, {sW11}, {QL}\nv_add_u32 v{RES+2}, s91, v{RES}\n'
          f's_cmp_ge_u32 {sC}, 12\ns_cselect_b32 s91, 32, 1024\nv_add_u32 v{RES+3}, s91, v{RES+2}\nv_add_u32 v{RES+6}, {sW11}, {vMISC}')
    def rl_make(self):
        A = self.A
        ld = '\n'.join(f'buffer_load_dwordx4 {vr(RES+8+4*i,4)}, v{RES+4}, {S_WB}, {sRA[i]} offen' for i in range(2))
        def s1():
            A.wait(vm=self.tk['rll'])
            for i in range(2): A(f'ds_write_b128 v{RES+6}, {vr(RES+8+4*i,4)} offset:{QL-MISC+1024*i}')
            for i in range(2): self.tk['rlt'] = self.tr(RES+8+4*i, f'v{RES+2+i}', 0)
        def s2():
            A.wait(lg=self.tk['rlt'])
            for i in range(2): A(f'buffer_store_dwordx4 {vr(RES+8+4*i,4)}, v{RES+5}, {S_WS}, 0 offen offset:{1024*i} sc1')
            self.csum(RES, RES+8, True); self.csum(RES, RES+12, False)
            A(self.row_voff(RES+4, RES+6))
        return [ld] + self.mark('rll'), [('bar2',), '', s1, '', '', s2] + self.mark('rls')
    def touch(self, srd, nbytes, part=None, voff=vL128, off=0):
        out = []; n = nbytes // 128 if part is None else part
        for k in range(0, n, 64):
            m = min(64, n - k)
            t = (f's_and_b32 s93, {sC}, 1\ns_lshl4_add_u32 s93, s93, {sJ}\ns_lshl2_add_u32 s93, s93, {sW}\ns_mul_i32 s93, s93, {nbytes}\n'
                 + (f's_add_u32 s93, s93, {128*k+off}\n' if k or off else ''))
            if m < 64: t += f's_mov_b64 exec, {hex((1 << m) - 1)}\n'
            t += f'buffer_load_dword a255, {voff}, {srd}, s93 offen'
            if m < 64: t += '\ns_mov_b64 exec, -1'
            out.append(t)
        return out
    def wo_voff(self, d, t):
        return (f'v_lshrrev_b32 v{d}, 3, {vLANE}\nv_and_b32 v{t}, 6, v{d}\nv_xor_b32 v{t}, v{t}, {vLANE}\nv_and_b32 v{t}, 7, v{t}\nv_lshlrev_b32 v{t}, 4, v{t}\n'
                f'v_lshl_add_u32 v{t}, v{d}, 10, v{t}\nv_lshrrev_b32 v{d}, 5, {vLANE}\nv_lshl_add_u32 v{d}, v{d}, 12, v{t}\n'
                f's_lshl_b32 s92, {sW}, 15\ns_lshr_b32 s93, {sJ}, 1\ns_lshl_b32 s93, s93, 7\ns_add_u32 s92, s92, s93\nv_add_u32 v{d}, s92, v{d}')
    def wo_off(self, n): return (WO if n < 8 else WQ) + 16384*((n >> 2) & 1) + 1024*(n & 3)
    def wo_src(self, n): return 4096*(n & 1) + 16384*((n >> 1) & 1)
    def wo_load(self, srd, voff, abase, ns):
        return [f's_add_u32 s93, {sO16[n>>2]}, {self.wo_src(n)}\nbuffer_load_dwordx4 {ar(abase+4*n,4)}, {voff}, {srd}, s93 offen' for n in ns]
    def wo_dma(self, srd, voff, ns):
        return [f's_add_u32 m0, {sW12}, {self.wo_off(n)}\ns_add_u32 s93, {sO16[n>>2]}, {self.wo_src(n)}\n'
                f'buffer_load_dwordx4 {voff}, {srd}, s93 offen lds' for n in ns]
    def wo_dma_rl(self, st):
        out = []
        for n in range(16):
            pre = f's_add_u32 m0, {sW12}, {self.wo_off(n)}\ns_lshl1_add_u32 {st}, {sCH[n>>2]}, {sRO}\n' if n % 4 == 0 else ''
            out.append(pre + f'buffer_load_dwordx4 {vL16}, {S_WS}, {st} offen offset:{1024*(n&3)} sc1 lds')
        return out
    def wo_write(self, abase, half):
        return [f'ds_write_b128 {vBKO}, {ar(abase+4*n,4)} offset:{self.wo_off(n)-65536}' for n in range(8*half, 8*half+8)]
    def wo_save(self, abase):
        out = ['\n'.join(f'v_add_u32 v{MU+f}, {sW12}, v{MU+f}' for f in range(4))]
        for n in range(16):
            o = self.wo_off(n & 12) - 65536; a = abase + 4*n
            out.append(f'ds_read_b64_tr_b16 {ar(a,2)}, v{MU+(n&3)} offset:{o}\nds_read_b64_tr_b16 {ar(a+2,2)}, v{MU+(n&3)} offset:{o+1024}')
        return out
    def mark(self, name): return [lambda: self.tk.__setitem__(name, self.A.tok())]
    def bpop(self, n, upto=None):
        B = self.B
        while B and (callable(B[0]) or (isinstance(B[0], tuple) and B[0][0] in self.open) or (isinstance(B[0], str) and (n > 0 or (upto and upto not in self.tk)))):
            x = B.pop(0)
            if callable(x): x()
            elif isinstance(x, str): self.A(x); n -= 1
        if upto: assert upto in self.tk, upto

    def stats_finish(self, t, isA):
        u = t + 1
        Q = [f'v_mov_b32 v{u}, v{t}',
             f'v_permlane32_swap_b32 v{t}, v{u}',
             f'v_mul_f32 v{t}, {hx(f2u(-1.0/512))}, v{t}',
             f'v_mul_f32 v{u}, {hx(f2u(1.0/512))}, v{u}',
             f'v_fma_f32 v{u}, -v{t}, v{t}, v{u}',
             f'v_max_f32 v{u}, 0, v{u}',
             f'v_add_f32 v{u}, {hx(f2u(1e-5))}, v{u}',
             f'v_rsq_f32 {vRSTD}, v{u}',
             f'v_cvt_pk_bf16_f32 v{u}, v{t}, v{t}']
        if isA: Q += [f'v_mul_f32 {vRSTD}, {hx(f2u(LOG2E))}, {vRSTD}']
        Q += [f'v_lshlrev_b32 v{u}, 16, v{u}',
              f's_lshl_b32 s91, {sW}, 7\ns_add_u32 s91, s91, {RSB}\nv_add_u32 v{MU}, s91, {vF4}',
              f'ds_write_b32 v{MU}, {vRSTD}',
              f'v_sub_f32 v{u}, v{t}, v{u}',
              f'v_cvt_pk_bf16_f32 v{MU}, v{t}, v{u}',
              f'v_cvt_pk_bf16_f32 v{MU+1}, v{t}, v{u}',
              f'v_cvt_pk_bf16_f32 v{MU+2}, v{t}, v{u}',
              f'v_cvt_pk_bf16_f32 v{MU+3}, v{t}, v{u}']
        Q += [f'ds_read_b128 {vr(AQ+4*i,4)}, {vRSR} offset:{32*i}' for i in range(4)]
        return Q

    def cs_write(self, src, t, addr, off):
        return [f'v_cvt_pk_bf16_f32 v{t}, v{src}, v{src}',
                f'v_lshlrev_b32 v{t+1}, 16, v{t}',
                f'v_sub_f32 v{t+1}, v{src}, v{t+1}',
                f'v_cvt_pk_bf16_f32 v{t+1}, v{t+1}, v{t+1}',
                f'ds_write_b64 {addr}, {vr(t,2)} offset:{off}']
    def cs_addr(self, dst):
        return ['\n'.join([f's_lshr_b32 s92, {sW}, 1', f's_lshl_b32 s92, s92, 9', f's_and_b32 s93, {sW}, 1', f's_lshl_b32 s93, s93, 3',
                f's_add_u32 s92, s92, s93', f's_add_u32 s92, s92, {CST}',
                f'v_and_b32 v{dst}, 31, {vLANE}', f'v_lshl_add_u32 v{dst}, v{dst}, 4, s92'])]

    def prologue(self):
        A = self.A
        vWQ = 'v18'
        XA = AQ + 8
        XRD = AQ
        A('s_cmpk_ge_u32 s2, 0x100'); A('s_cbranch_scc1 L_end')
        if self.probe or self.debug: A('s_memtime s[100:101]' if self.debug == 2 else 's_memrealtime s[100:101]')
        A('s_load_dwordx2 s[24:25], s[0:1], 64')
        A('s_load_dwordx16 s[32:47], s[0:1], 0')
        A('s_getpc_b64 s[96:97]'); A('L_pc:')
        A('s_lshr_b32 s3, s2, 3'); A('s_lshl_b32 s98, s3, 11')
        A(f'v_readfirstlane_b32 {sW}, v0')
        A('v_lshl_add_u32 v15, v0, 3, s98')
        A('global_load_dword v254, v15, s[96:97]')
        A('v_and_b32 v0, 63, v0')
        A(f's_lshr_b32 {sW}, {sW}, 6')
        A(f's_and_b32 {sC}, s2, 7'); A(f's_lshr_b32 {sROT}, s3, 4'); A(f's_lshl1_add_u32 {sC}, {sC}, {sROT}')
        A(f's_and_b32 {sJ}, s3, 15'); A(f's_lshl2_add_u32 {sTB}, {sC}, {sW}')
        A('s_and_b32 s3, s3, 1'); A(f's_lshl1_add_u32 {sROT}, {sROT}, s3')
        A(f'v_lshlrev_b32 {vL16}, 4, {vLANE}')
        A(f's_lshl4_add_u32 s83, {sTB}, {sJ}'); A('s_lshl_b32 s83, s83, 11')
        t0 = self.p.get('t0', 'real')
        if t0 == 'real':
            A(f'v_lshrrev_b32 v12, 2, {vLANE}'); A(f'v_and_b32 v13, 3, {vLANE}')
            A(f'v_mul_u32_u24 {vWQ}, 3072, v12'); A(f'v_lshl_add_u32 {vWQ}, v13, 4, {vWQ}')
            A(f's_lshl2_add_u32 s82, {sROT}, {sW}'); A('s_mulk_i32 s82, 1536'); A(f's_add_u32 s82, s82, {sJ}'); A('s_addk_i32 s82, 16'); A('s_lshl_b32 s82, s82, 6')
            A(f's_lshl_b32 m0, {sW}, 11')
        else:
            A(f'v_lshlrev_b32 {vL128}, 7, {vLANE}')
            A('s_lshr_b32 s82, s2, 3'); A(f's_lshl2_add_u32 s82, s82, {sW}'); A('s_mulk_i32 s82, 12288')
            if t0 == 'kv': A(f'v_lshrrev_b32 v12, 4, {vLANE}'); A(f'v_lshl_add_u32 v12, v12, 10, {vL128}')
        mw = self.p.get('mw', 0)
        if mw:
            A(f'v_lshlrev_b32 {vL128}, 7, {vLANE}')
            A(f's_lshl4_add_u32 s81, {sTB}, {sJ}'); A('s_lshl_b32 s80, s81, 9')
            if mw & 1: A('s_mulk_i32 s81, 1536')
            else: A('s_lshr_b32 s84, s81, 1'); A('s_add_u32 s81, s81, s84'); A('s_add_u32 s81, s81, 1'); A('s_lshl_b32 s81, s81, 10')
            A('s_lshl_b32 s18, 1, 19'); A('s_mov_b32 s19, 0x20000')
        A('s_lshl_b32 s6, 1, 21'); A('s_mov_b32 s7, 0x20000'); A('s_lshl_b32 s10, 3, 19'); A('s_mov_b32 s11, s7')
        A('s_waitcnt lgkmcnt(0)')
        A(f's_load_dword {sNON}, s[24:25], {EPOCH}')
        A('s_mov_b64 s[4:5], s[32:33]'); A('s_mov_b64 s[8:9], s[34:35]')
        def mwl():
            A('s_mov_b64 exec, %s' % ('0xfff' if mw & 1 else '0xff')); A(f'buffer_load_dword a255, {vL128}, {S_WA}, s81 offen')
            if mw & 4: A('s_mov_b64 s[16:17], s[36:37]'); A('s_mov_b64 exec, 15'); A(f'buffer_load_dword a255, {vL128}, {S_OA}, s80 offen')
            A('s_mov_b64 exec, -1')
        if mw and mw & 8: mwl()
        ntx = ' nt' if self.p.get('nt', 0) & 1 else ''
        A(f'buffer_load_dwordx4 {vr(AK,4)}, {vL16}, {S_X0}, s83 offen{ntx}')
        trow = A(f'buffer_load_dwordx4 {vr(AK+4,4)}, {vL16}, {S_X0}, s83 offen offset:1024{ntx}')
        if mw and not mw & 8: mwl()
        if t0 == 'real':
            if self.p.get('w1') != 2: A(f'buffer_load_dwordx4 {vWQ}, {S_WA}, s82 offen lds')
            if not self.p.get('w1'):
                A('s_addk_i32 m0, 31744')
                A(f'buffer_load_dwordx4 {vWQ}, {S_WA}, s82 offen offset:1024 lds')
            if self.p.get('w4'):
                A('s_addk_i32 m0, 1024'); A(f's_add_u32 s82, s82, {16*3072}')
                A(f'buffer_load_dwordx4 {vWQ}, {S_WA}, s82 offen offset:1024 lds')
                A('s_addk_i32 m0, -31744')
                A(f'buffer_load_dwordx4 {vWQ}, {S_WA}, s82 offen lds')
        elif t0 == 'kv':
            if self.p.get('split0'): A('s_mov_b32 exec_hi, 0')
            A(f'buffer_load_dword a255, v12, {S_WA}, s82 offen offset:1024')
            if self.p.get('split0'): A('s_mov_b32 exec_hi, -1'); A(f'v_mov_b32 v{AQ+14}, v12')
        else:
            A(f'buffer_load_dword a255, {vL128}, {S_WA}, s82 offen')
            A('s_addk_i32 s82, 8192'); A('s_mov_b32 exec_hi, 0')
            A(f'buffer_load_dword a255, {vL128}, {S_WA}, s82 offen')
            A('s_mov_b32 exec_hi, -1')
        A('L_first:')
        if self.probe: A('s_mov_b32 s99, s100')
        if self.debug:
            self.names.append('first'); A(f'v_mov_b32 {vDBG}, 0'); A(f'v_writelane_b32 {vDBG}, s100, 0')
        A(f's_mul_i32 s34, {sW}, {32*3072}'); A(f's_lshl_b32 s35, {sJ}, 6'); A('s_add_u32 s34, s34, s35')
        if t0 == 'real': A(f'v_lshlrev_b32 {vL128}, 7, {vLANE}')
        else:
            A(f'v_lshrrev_b32 v12, 2, {vLANE}'); A(f'v_and_b32 v13, 3, {vLANE}')
            A(f'v_mul_u32_u24 {vWQ}, 3072, v12'); A(f'v_lshl_add_u32 {vWQ}, v13, 4, {vWQ}')
        A(f'v_add_u32 {vWQ}, s34, {vWQ}')
        A(f'v_mov_b32 v{RES+7}, v15')
        A(f'v_lshrrev_b32 v12, 4, {vLANE}'); A(f'v_and_b32 v13, 15, {vLANE}'); A('v_xor_b32 v13, v13, v12'); A('v_lshlrev_b32 v13, 4, v13')
        A(f'v_lshl_add_u32 v{XA}, v12, 10, v13')
        A(f's_lshl_b32 {sXO}, {sTB}, 15'); A(f'v_add_u32 v{XA}, {sXO}, v{XA}')
        for i in range(1, 4): A(f'v_xor_b32 v{XA+i}, {64*i}, v{XA}')
        A(f's_lshl_b32 {sW11}, {sW}, 11')
        A(f's_lshl_b32 s89, {sW}, 13')
        for g in range(4):
            A(f's_add_u32 {sCH[g]}, {sROT}, {g}'); A(f's_and_b32 {sCH[g]}, {sCH[g]}, 3'); A(f's_lshl_b32 {sCH[g]}, {sCH[g]}, 13')
            A(f's_mul_i32 {sWO48[g]}, {sCH[g]}, 48'); A(f's_lshr_b32 {sXC[g]}, {sCH[g]}, 5')
        SLOT = [WO, WQ, MISC, WO]
        def xdma(g):
            Q = []
            for i in range(8):
                Q.append(f's_add_u32 m0, s89, {SLOT[g]+1024*i}\n'
                         f's_add_u32 s93, {sXC[g]}, {4096*i}\nbuffer_load_dwordx4 v{XA+(i&3)}, {S_X0}, s93 offen lds')
            return Q
        kvd = lambda srd, g: self.w_dma(srd, g, 1024, WK) + self.w_dma(srd, g, 2048, WV)
        P = self.p
        B = self.B
        w0 = kvd(S_WA, 0)
        if t0 == 'real': w0 = [] if P.get('w4') else w0 if P.get('w1') == 2 else w0[1:] if P.get('w1') else [w0[1], w0[3]]
        PT = [f's_sub_u32 s92, {sOWA}, {OB}\ns_mov_b64 exec, 0xffff\n'
              f'buffer_load_dword a255, {vL128}, {S_WS}, {sOWA} offen\nbuffer_load_dword a255, {vL128}, {S_OUT}, s92 offen\n'
              f's_lshl_b32 s91, {sJ}, 7\ns_add_u32 s91, s91, {sST}\ns_mov_b64 exec, 1\nbuffer_load_dword a255, {vL128}, {S_WS}, s91 offen\n'
              f'buffer_load_dword a255, {vL128}, {S_WS}, {sXF} offen\nbuffer_load_dword a255, {vL128}, {S_WS}, {sOF} offen\ns_mov_b64 exec, -1']
        lct = A.lab('pc')
        PTs = PT[0].split('\n')
        items = {'W0': w0, 'PT': PT, 'PTf': ['\n'.join(PTs[4:])], 'PTo': ['\n'.join([PTs[1], PTs[2], PTs[-1]])], 'PTx': ['\n'.join([PTs[0], PTs[1], PTs[3], PTs[-1]])],
                 'MW': [f's_lshl4_add_u32 s91, {sTB}, {sJ}\ns_lshl_b32 s92, s91, 9\ns_lshr_b32 s91, s91, 1\ns_lshl_b32 s91, s91, 11\ns_add_u32 s91, s91, s92\n'
                        f's_mov_b64 exec, 15\nbuffer_load_dword a255, {vL128}, {S_WA}, s91 offen\nbuffer_load_dword a255, {vL128}, {S_OA}, s92 offen\ns_mov_b64 exec, -1'], 'IS': [self.init_stores(RES+8)], 'R': self.res_load(),
                 'CT': [f's_getpc_b64 s[92:93]\n{lct}:\ns_sub_u32 s92, s92, {lct}-L_pc\ns_subb_u32 s93, s93, 0\nglobal_load_dword a255, v{RES+7}, s[92:93]'],
                 'st0': [f'buffer_load_dwordx2 v[14:15], v16, {S_WS}, s87 offen sc1'] + self.mark('st0')}
        for g in range(1, 4): items[f'W{g}'] = kvd(S_WA, g)
        for g in range(4):
            x = xdma(g); items[f'x{g}a'] = ([('bar0',)] if g == 3 else []) + x[:4]; items[f'x{g}b'] = x[4:]
            items[f'Q{g}'] = [('bar1',)] + self.w_dma(S_WA, g, 0, WQ)
            items[f'O{g}'] = [('bar3',)] + self.wo_dma(S_OA, 'v12', range(4*g, 4*g+4)) if g < 2 else self.wo_load(S_OA, 'v12', WOA, range(4*g, 4*g+4))
            items[f'B{g}'] = [('b2',)] + self.rl_dma(g, 0, WK) + self.rl_dma(g, 1, WV)
            items[f'Bq{g}'] = [('bx',)] + self.rl_dma(g, 2, WQ)
        items['RLl'], items['RLs'] = self.rl_make()
        for k, v in dict(g0=2, g1=0, g2=0, opb=(8, 9, 12, 13), x1=2, e1=4).items(): P.setdefault(k, v)
        order = P.get('order', 'x0a W0 x0b x1a x1b W1 W2 st0 RLl x2a x2b W3 x3a x3b Q0 RLs O0 Q1 Q2 Q3 |part PT O1 O2 O3 |gath R CT B0 B1 B2 B3 Bq0 Bq1 Bq2 Bq3').split()
        need = {'x0': 'W0 x0a x0b', 'x1': 'W1 x1a x1b', 'x2': 'W2 x2a x2b', 'w3': 'W3', 'x3': 'W3 x3a x3b', 'wq': 'Q0 Q1 Q2 Q3', 'wo0': 'O0 O1', 'wo1': 'O2 O3',
                'res': 'R', 'kvB': 'B0 B1 B2 B3', 'qB': 'Bq0 Bq1 Bq2 Bq3'}
        for k in P.get('skip', '').split(): items[k] = [x for x in items[k] if not isinstance(x, str)]
        seen = set()
        for o in order:
            if o[0] == '|': B.append((o[1:],)); continue
            if o[-1] == '-':
                it = items[o[:-1]]; k = next(i for i, x in enumerate(it) if isinstance(x, str))
                B += it[:k+1]; items[o[:-1]] = it[k+1:]; continue
            B += items[o]; seen.add(o)
            for k, v in list(need.items()):
                if set(v.split()) <= seen: B += self.mark(k); del need[k]
        assert not need
        self.bpop(P.get('b0', 6))
        if P.get('pst'): self.stamp('b0')
        for b, p in ((16, 36), (12, 40), (20, 42), (28, 44), (32, 24)): A(f's_mov_b64 s[{b}:{b+1}], s[{p}:{p+1}]')
        for b, n in ((12, 0x180000), (16, 0x80000), (20, 0x80000), (24, WS_BYTES), (28, 0x200000), (32, WS_BYTES - PAIR)):
            A(f's_mov_b32 s{b+2}, {hx(n)}'); A(f's_mov_b32 s{b+3}, s7')
        A(f's_mov_b32 {sSPIN}, 0')
        A(f'v_lshrrev_b32 v12, 5, {vLANE}')
        A(f'v_lshlrev_b32 {vTR0}, 9, v12')
        for (o, wd, sh) in [(2, 2, 6), (4, 1, 5), (0, 1, 4), (1, 1, 3)]:
            A(f'v_bfe_u32 v13, {vLANE}, {o}, {wd}'); A(f'v_lshl_add_u32 {vTR0}, v13, {sh}, {vTR0}')
        A(f'v_add_u32 {vTR1}, 0x10000, {vTR0}')
        A(f'v_add_u32 {vBK0}, {sW11}, {vL16}'); A(f'v_add_u32 {vBK1}, 0x10000, {vBK0}')
        A(f'v_add_u32 {vMISC}, {MISC}, {vL16}')
        A(f'v_add_u32 {vBKO}, {sW11}, {vBK1}')
        A(f's_lshl_b32 s91, {sW}, 7'); A(f's_add_u32 s91, s91, {RSB}')
        A(f'v_and_b32 v13, 31, {vLANE}')
        A(f'v_lshlrev_b32 {vF4}, 2, v13')
        A(f'v_lshl_add_u32 {vRSR}, v12, 4, s91')
        A(f'v_and_b32 v15, 15, {vLANE}'); A('v_xor_b32 v15, v15, v12'); A('v_lshlrev_b32 v15, 4, v15')
        A(f'v_lshl_add_u32 v15, v13, 8, v15'); A(f's_add_u32 s91, s89, {WQ}'); A(f'v_add_u32 v{XRD}, s91, v15')
        for s in range(1, 8): A(f'v_xor_b32 v{XRD+s}, {32*s}, v{XRD}')
        A(f'v_mov_b32 v16, {hx(ONES)}')
        self.pop(self.selector(), 9)
        LATE = self.cs_addr(17) + [self.wo_voff(12, XR+96)]
        if P.get('pst'): self.stamp('c1')
        LATE += [f's_mov_b32 s96, 0xffff0000\ns_mov_b32 s97, 0xffff0000\ns_add_u32 {sOO}, {sXO}, {OB}',
                 f's_lshl_b32 s91, {sTB}, 11\ns_add_u32 {sST}, s91, {STAT}\ns_lshl_b32 s91, {sTB}, 7\ns_add_u32 {sXF}, s91, {XF}\ns_add_u32 {sOF}, s91, {OF}',
                 f's_lshl_b32 {sW12}, {sW}, 12\ns_mul_i32 s91, {sJ}, {3*32768}\ns_add_u32 s91, s91, {RLB}\n' +
                 '\n'.join(f's_add_u32 {sRL[g]}, {sCH[g]}, s91' for g in range(4)),
                 '\n'.join(f's_lshl_b32 {sO16[g]}, {sCH[g]}, 4' for g in range(4)),
                 f's_lshl2_add_u32 {sOFA}, {sJ}, {sW}\ns_lshl_b32 {sOFA}, {sOFA}, 13\ns_add_u32 {sOFA}, {sOFA}, {PART}\n'
                 f's_lshl_b32 {sPST}, {sC}, 9\ns_and_b32 {sOWA}, {sPST}, 0x1c00\ns_add_u32 {sPST}, {sPST}, {sOFA}']
        LATE += [f's_addk_i32 {sOWA}, 1024\ns_and_b32 {sOWA}, {sOWA}, 0x1c00\ns_add_u32 {sGOF[p]}, {sOWA}, {sOFA}' for p in range(8)]
        LATE += [f's_lshl_b32 {sOWA}, {sJ}, 11\ns_add_u32 {sOWA}, {sOWA}, {sOO}\ns_lshl3_add_u32 {sOFA}, {sJ}, {sOF}']
        A('s_getreg_b32 s86, hwreg(HW_REG_XCC_ID, 0, 4)')
        A(f's_lshl_b32 s87, {sTB}, 11'); A(f's_add_u32 s87, s87, {ST0}')
        A(f's_lshl_b32 s84, {sJ}, 7'); A('s_add_u32 s84, s84, s87')
        A(f'v_lshrrev_b32 v15, 2, {vLANE}'); A(f'v_and_or_b32 v15, {vLANE}, 3, v15'); A('v_lshlrev_b32 v15, 3, v15')
        A('v_lshrrev_b32 v14, 1, v13'); A('v_lshl_add_u32 v14, v14, 1, v12'); A('v_and_b32 v13, 1, v13'); A('v_lshl_add_u32 v14, v14, 1, v13')
        A(f'v_add_u32 v13, {sW11}, {vTR0}')
        for i in range(4): A(f'v_mov_b32 v{AV+i}, 0')
        t_, _ = self.capture(lambda: self.early_setup(XR+100))
        LATE += [t_] + ([] if 'IS' in order else [self.init_stores(XR+100)]) + [self.row_tile() + f'\ns_mov_b32 {sEXP}, s91']
        if not P.get('late', 1): A('v_mov_b32 v17, v12'); self.pop(LATE, 99)
        if P.get('pst'): self.stamp('c2')
        if P.get('walk', 1) == 1: self.walk()
        if P.get('pst'): self.stamp('walk')
        self.bpop(P.get('b0a', 0))
        A.wait(vm=trow)
        if P.get('pst'): self.stamp('rows')
        for i in range(4):
            for r in range(2):
                A(f'v_dot2c_f32_bf16 v{AV+2*r}, v{AK+4*r+i}, v16'); A(f'v_dot2c_f32_bf16 v{AV+2*r+1}, v{AK+4*r+i}, v{AK+4*r+i}')
        A(f'v_permlane32_swap_b32 v{AV}, v{AV+1}'); A(f'v_permlane32_swap_b32 v{AV+2}, v{AV+3}')
        A(f'v_add_f32 v{AV}, v{AV}, v{AV+1}'); A(f'v_add_f32 v{AV+2}, v{AV+2}, v{AV+3}')
        A(f'v_permlane16_swap_b32 v{AV}, v{AV+2}'); A(f'v_add_f32 v{AV}, v{AV}, v{AV+2}')
        for r in (8, 4, 2, 1): A(f'v_add_f32_dpp v{AV}, v{AV}, v{AV} row_ror:{r} row_mask:0xf bank_mask:0xf')
        A('s_waitcnt lgkmcnt(0)')
        A(f's_add_u32 {sNON}, {sNON}, 0x9e3779b9')
        A(f's_add_u32 s85, {sNON}, 32'); A('s_add_u32 s91, s85, s86'); A(f'v_mov_b32 v{AV+1}, s91')
        if P.get('pst'): self.stamp('red')
        self.bpop(P.get('b0b', 0))
        if P.get('pst'): self.stamp('b0b')
        A('s_mov_b32 exec_lo, 0xf000f'); A('s_mov_b32 exec_hi, 0xf000f')
        A(f'buffer_store_dwordx2 {vr(AV,2)}, v15, {S_WS}, s84 offen sc1')
        A('s_mov_b64 exec, -1')
        A('v_lshlrev_b32 v16, 5, v14')
        if P.get('walk', 1) == 3: self.walk()
        self.stamp('start')
        self.bpop(0, 'x0'); self.bpop(P.get('b1', 4))
        self.rl_setup()
        if P.get('walk', 1) == 2: self.walk()
        if P.get('pst'): self.stamp('b1')
        tw = {}
        rd = lambda n: self.p1_rd(n, 0, tw)
        CK, CV = QF+4, AQ+12
        cq = lambda g, i: KVA + 32*(i & 1) + 8*g + 4*(i >> 1)
        def csr(g):
            for i in range(4): self.tr(cq(g, i), 'v13', (WK, WV)[i & 1] + 8192*g + 1024*(i >> 1), acc=True)
        def csm(g): return [lambda i=i: self.csum((CK, CV)[i & 1], cq(g, i), g == 0 and i < 2, True) for i in range(4)]
        def xrd(g):
            self.bpop(0, f'x{g}')
            while len(A.vmops) - self.tk[f'x{g}'][0] < P.get('ahead', [14]*4)[g]:
                n_ = len(B); self.bpop(1)
                if len(B) == n_: break
            if g == 2:
                for s in range(8): A(f'v_add_u32 v{XRD+s}, 0x8000, v{XRD+s}')
            A.wait(vm=self.tk[f'x{g}'])
            so = {0: WO-WQ, 1: 0, 2: MISC-WQ-0x8000, 3: WO-WQ-0x8000}[g]
            for s in range(8): A(f'ds_read_b128 {vr(XR+4*(8*g+s),4)}, v{XRD+s} offset:{so}')
        def bar(g):
            self.barrier(); self.open.add(f'bar{g}'); self.stamp(f'chunk{g}')
        def stchk():
            self.bpop(0, 'st0'); A.wait(vm=self.tk['st0'])
            self.retry(['v_subrev_u32 v15, s85, v15', 'v_cmp_lt_u32 vcc, 15, v15'], [f'buffer_load_dwordx2 v[14:15], v16, {S_WS}, s87 offen sc1'])
            A('v_cmp_ne_u32 vcc, s86, v15')
            A('s_cmp_lg_u64 vcc, 0')
            A(f's_cselect_b32 {sSLOW}, {hx(SLOW)}, 0')
            if self.force_slow: A(f's_mov_b32 {sSLOW}, {hx(SLOW)}')
        xrd(0); csr(0); bar(0)
        rd(0); rd(1)
        self.pop(csm(0), 9)
        dq = LATE; cr = 0; sf = self.stats_finish(14, True); pa = self.preA(0)
        pace = P.get('pace', [1]*33); acc_ = 0
        n0 = P.get('n00', 27)
        for n in range(n0):
            g1 = n // 8 + 1
            A.wait(lg=tw[1, n])
            self.p1_mm(0, n, 0)
            if n % 8 == 6 and g1 < 4:
                bar(g1); dq = csm(g1) + dq
                stl = order.index('st0') > order.index('x2b')
                if g1 == 2 and not stl: dq += sf[:-4] + pa[2:6]
                if g1 == 3:
                    cw = self.cs_write(CK, CK+2, 'v17', 0*1024) + self.cs_write(CV, CV+2, 'v17', 1*1024)
                    if stl: dq += cw + [stchk] + sf + pa[:6]
                    else: dq += pa[:2] + cw + sf[-4:]
            rd(n+2)
            self.p1_mm(1, n, 0)
            acc_ += pace[n]
            if acc_ >= 1: self.bpop(int(acc_)); acc_ -= int(acc_)
            if n % 8 == 5 and g1 < 4:
                xrd(g1); csr(g1)
                if g1 == 2 and order.index('st0') < order.index('x2b'): stchk()
            cr = self.popb(dq, cr + (P.get('lateb', 9) if n < 13 else 4 if n < 22 else P.get('tb', 5)))
            if n == 12: self.pop(dq, 99)
        self.pop(dq, 99)
        self.p1_tail(0, n0, tw, {}, self.barrier)

    def ones_slot(self, t):
        if not self.p.get('vz', 1): return [f'v_mov_b32 v{t+i}, {hx(ONES)}' for i in range(4)]
        return [f's_mov_b64 s[92:93], 0x101\nv_mov_b32 v{t+1}, {hx(ONES)}\nv_cndmask_b32_e64 v{t}, 0, v{t+1}, s[92:93]'] + [f'v_mov_b32 v{t+i}, v{t}' for i in range(1, 4)]
    def early_setup(self, t):
        A = self.A
        A(f's_lshr_b32 s91, {sW}, 1\ns_lshl1_add_u32 s91, {sC}, s91\ns_and_b32 s92, {sJ}, 1\ns_lshl1_add_u32 s91, s91, s92\n'
          f's_lshr_b32 s92, {sJ}, 1\ns_and_b32 s93, {sW}, 1\n'
          f's_lshl_b32 {sOFR}, s91, 7\ns_add_u32 {sXW}, {sOFR}, s93\ns_lshl_b32 {sXW}, {sXW}, 8\ns_add_u32 {sOR}, {sXW}, {OB}\n'
          f's_lshl1_add_u32 s93, s92, s93\ns_lshl3_add_u32 {sXFW}, s93, {sOFR}\ns_add_u32 {sXFW}, {sXFW}, {XF}\ns_add_u32 {sOFR}, {sOFR}, {OF}\n'
          f's_lshl_b32 s93, s92, 12\ns_add_u32 {sXW}, {sXW}, s93\n'
          f's_lshr_b32 s93, s92, 2\ns_lshl1_add_u32 s93, s91, s93\ns_lshl_b32 s93, s93, 10\ns_and_b32 {sSW}, s92, 3\n'
          f's_lshl2_add_u32 {sSW}, {sSW}, s93\ns_add_u32 {sSW}, {sSW}, {STAT}')
    def init_stores(self, t):
        pre = '\n'.join(self.ones_slot(t)) + f'\nv_lshrrev_b32 v{t+4}, 3, {vLANE}\nv_lshl_add_u32 v{t+4}, v{t+4}, 10, {vL16}\nv_mov_b32 v{t+5}, 0\n'
        return (pre + f's_lshl_b32 s91, {sJ}, 6\ns_add_u32 s91, s91, {sTB}\ns_mul_i32 s91, s91, {REC}\ns_add_u32 s91, s91, {KVB}\n'
                f's_mov_b64 exec, 0xffff\nbuffer_store_dwordx4 {vr(t,4)}, v{t+4}, {S_WS}, s91 offen offset:3072 sc1\n'
                f's_add_u32 s91, s91, {PAIR}\nbuffer_store_dwordx4 {vr(t,4)}, v{t+4}, {S_WS}, s91 offen offset:3072 sc1\ns_mov_b64 exec, -1\n'
                f'buffer_store_dword v{t+5}, {vL16}, {S_WS}, {sSW} offen')

    def row_tile(self):
        return (f's_sub_u32 s91, {sOFR}, {OF}\ns_lshl_b32 s91, s91, 8\ns_and_b32 s92, {sW}, 1\ns_lshl_b32 s92, s92, 14\ns_add_u32 s91, s91, s92\n'
                f's_lshr_b32 s92, {sJ}, 1\ns_lshl_b32 s92, s92, 7\ns_add_u32 s91, s91, s92')
    def row_voff(self, d, t):
        return (f'v_lshrrev_b32 v{d}, 3, {vLANE}\nv_xor_b32 v{t}, v{d}, {vLANE}\nv_and_b32 v{t}, 7, v{t}\nv_lshlrev_b32 v{t}, 4, v{t}\nv_lshl_add_u32 v{d}, v{d}, 10, v{t}')
    def row_lds(self, d, base):
        return (f'v_bfe_u32 v{d}, {vLANE}, 4, 1\nv_lshrrev_b32 v{d+1}, 5, {vLANE}\nv_lshl_add_u32 v{d}, v{d}, 1, v{d+1}\nv_xor_b32 v{d}, v{d}, {vLANE}\n'
                f'v_and_b32 v{d}, 7, v{d}\nv_and_b32 v{d+1}, 15, {vLANE}\nv_lshl_add_u32 v{d}, v{d+1}, 3, v{d}\n'
                f's_add_u32 s92, {sW11}, {base}\nv_lshl_add_u32 v{d}, v{d}, 4, s92\nv_xor_b32 v{d+1}, 64, v{d}')
    def res_load(self):
        return [('part',), f's_add_u32 m0, {sW11}, {QL}\ns_add_u32 s92, s84, {8192-1024}\n'
                f'buffer_load_dwordx4 v{RES+4}, {S_X0}, s84 offen lds\nbuffer_load_dwordx4 v{RES+4}, {S_X0}, s92 offen offset:1024 lds']
    def x_switch(self):
        return [''
                f's_cmp_lg_u32 {sMODE}, 0\ns_cselect_b64 s[4:5], s[24:25], s[28:29]\ns_cselect_b32 s6, s26, s30\n'
                f's_cselect_b32 s91, {hx(XB)}, 0\ns_add_u32 {sXO}, {sXO}, s91\ns_add_u32 {sXW}, {sXW}, s91']
    def res_read(self):
        A = self.A
        A(self.row_lds(RES, QL))
        A(f'ds_read_b128 {vr(RES+4,4)}, v{RES}'); self.tk['rr'] = A(f'ds_read_b128 {vr(RES+12,4)}, v{RES+1}')
    def res_unpack(self):
        A = self.A
        A.wait(lg=self.tk['rr'])
        for u in range(2):
            for i in range(2): A(f'v_permlane16_swap_b32 v{RES+8*u+4+i}, v{RES+8*u+6+i}')
        for u in range(2):
            for i in range(4):
                s = RES + 8*u + 4 + i; d = RES + 8*u + 2*i
                A(f'v_lshlrev_b32 v{d}, 16, v{s}\nv_and_b32 v{d+1}, 0xffff0000, v{s}')

    P1SEQ = list(range(32)) + ['mu']
    def p1_rd1(self, b, n, L, tw):
        q = WF + 16*b + 4*(n & 3); s = self.P1SEQ[n]
        if s != 'mu': tw[b, n] = self.wrd(L, q, vTR0, (WK, WV)[b] + 1024*s)
        else: tw[b, n] = self.A(f'ds_read_b128 {vr(q,4)}, {vMISC} offset:{CST-MISC+(3*(L%2)+b)*1024}')
    def p1_rd(self, n, L, tw): self.p1_rd1(0, n, L, tw); self.p1_rd1(1, n, L, tw)
    def p1_mm(self, b, n, L):
        q = WF + 16*b + 4*(n & 3); s = self.P1SEQ[n]; x = MU if s == 'mu' else XR + 4*s; acc = (AK, AV)[b]
        if b == 0 and L % 2: self.mfma(acc, q, x, None if n == 0 else acc)
        else: self.mfma(acc, x, q, None if n == 0 else acc)
    def p1_tail(self, L, n0, tw, tx, pre_mu=None):
        A = self.A
        for n in range(n0, 33):
            A.wait(vm=tx.get(self.P1SEQ[n]), lg=tw[0, n])
            self.p1_mm(0, n, L)
            for k in ([n+2, n+3] if n == n0 else [n+3]):
                if k == 32 and pre_mu: pre_mu()
                if k <= 32: self.p1_rd1(0, k, L, tw)
            if n in (n0+1, n0+2) and n + 1 < 32: self.p1_rd1(1, n+1, L, tw)
            if n % 4 == 0: self.bpop(1)
        KE = self.epiKA(L) if L % 2 == 0 else self.epiKB(L)
        cr = 0
        for n in range(n0, 33):
            A.wait(lg=tw[1, n])
            self.p1_mm(1, n, L)
            if n + 4 <= 32: self.p1_rd1(1, n+4, L, tw)
            if n > n0: cr = self.popb(KE, cr + self.p.get('keb', 4))
        self.KE = KE
    def pass1(self, L, tw, E):
        A = self.A; isA = (L % 2 == 0); mat = L % 2; P = self.p
        tx = {}
        D = P['depth']
        def ldx(s):
            if s % 8 == 0: A(f's_add_u32 s90, {sXO}, {sCH[s//8]}')
            if s % 8 == 4: A('s_add_u32 s90, s90, 4096')
            tx[s] = A(f'buffer_load_dwordx4 {vr(XR+4*s,4)}, {vL16}, {S_XB}, s90 offen offset:{(s%4)*1024} sc1')
        st = {}
        sl = [f'buffer_load_dwordx4 {vr(AQ+4*i,4)}, {vL16}, {S_WS}, {sST} offen offset:{1024*i} sc1' for i in range(2)]
        F = [lambda i=i: st.__setitem__(i, A(sl[i])) for i in range(2)]
        for s in range(D):
            ldx(s)
            if s >= 1: self.pop(E, (2 if L == 1 else 1) if s - 1 < P.get('e_first', 7) else 0)
        nx = D
        par = L & 1; op = '0x80' if par else '0xfe'
        chk = [f'v_bitop3_b32 v14, v{AQ}, v{AQ+1}, v{AQ+2} bitop3:{op}'] + \
              [f'v_bitop3_b32 v14, v14, v{AQ+2*i+1}, v{AQ+min(2*i+2,7)} bitop3:{op}' for i in range(1, 4)] + \
              ['v_and_b32 v14, 1, v14', f'v_cmp_ne_u32 vcc, {par}, v14']
        lo, lb = A.lab('ro'), A.lab('rb')
        A.tail += [f'{lo}:'] + sl + [f's_add_u32 {sSPIN}, {sSPIN}, 1', f's_cmp_lt_u32 {sSPIN}, {SPIN_LIMIT}', 's_cselect_b64 s[94:95], -1, 0',
                   's_waitcnt vmcnt(0)'] + chk + ['s_and_b64 vcc, vcc, s[94:95]', f's_cbranch_scc1 {lo}', f's_branch {lb}']
        G = [lambda: A.wait(vm=st[1])] + chk[:-1] + [chk[-1] + f'\ns_cbranch_vccnz {lo}\n{lb}:']
        for i in range(2): G.append(f'v_pk_add_f32 {vr(AQ+2*i,2)}, {vr(AQ+2*i,2)}, {vr(AQ+4+2*i,2)}')
        G.append(f'v_pk_add_f32 {vr(AQ,2)}, {vr(AQ,2)}, {vr(AQ+2,2)}')
        G.append(f'v_add_f32 v14, v{AQ}, v{AQ+1}')
        G += self.stats_finish(14, isA)
        G2 = self.preA(L) if isA else self.preB(L)
        g0 = P.get('g0n', 8)
        cr = 0
        n0 = P.get('n0', 26)
        for n in range(n0):
            A.wait(vm=tx[n], lg=tw[1, n])
            if n in (0, 8, 16, 24): self.stamp(f'L{L}.p1s{n}')
            self.p1_mm(0, n, L)
            if n == P.get('bq', 24): A('s_barrier')
            self.p1_rd(n+2, L, tw)
            self.p1_mm(1, n, L)
            if F and n >= P.get('sn', 0): self.pop(F, 1)
            elif nx < 32:
                ldx(nx); nx += 1
                if nx < 32 and n in (P.get('l1x', range(3, 14)) if L == 1 else P.get('xx', (12, 15, 18, 20))): ldx(nx); nx += 1
            elif n % 2 == 0: self.bpop(1)
            if L == 1 or n % 2 == 1: self.pop(E, 1)
            if n == P.get('bq', 24) - 4: assert not E
            if n >= g0: cr = self.popb(G if G else G2, cr + (P.get('gb', 3) if nx < 32 else 6))
        assert nx == 32
        self.pop(G, 99); self.pop(G2, 99)
        self.p1_tail(L, n0, tw, tx)

    def p2_step(self, L, s, tw, mid=None):
        A = self.A
        q = WF + 4*((s + 4) & 7); x = XR + 4*s if s < 32 else MU
        A.wait(lg=tw[s])
        if s in self.p.get('p2st', ()): self.stamp(f'L{L}.p2s{s}')
        self.mfma(AQ, q, x, None if s == 0 else AQ)
        if mid: mid()
        k = s + 4; q = WF + 4*((k + 4) & 7)
        if k < 32: tw[k] = self.wrd(L, q, vTR1, WQ - 65536 + 1024*k)
        elif k == 32: tw[k] = A(f'ds_read_b128 {vr(q,4)}, {vMISC} offset:{CST-MISC+(3*(L%2)+2)*1024}')
    def pass2(self, L, F, pre, at=None, before=None, s0=0):
        at = at or {}
        for s in range(s0, 33):
            def mid():
                if before: self.pop(before, 1)
                if s + 4 == 32: self.pop(F, 99)
            self.p2_step(L, s, pre, mid)
            self.pop(F, 1)
            self.pop(at.get(s, []), 99)
    def pass2_pre(self, L):
        return {s: self.wrd(L, WF + 4*(s+4), vTR1, WQ - 65536 + 1024*s) for s in range(4)}

    def colsum_q(self, L, abase, acc):
        A = self.A
        A(f'v_add_u32 v13, {sW11}, {vTR1}')
        tc = {n: self.tr(abase + 4*n, 'v13', WQ - 65536 + self.bk_off(n), acc=True) for n in range(8)}
        A.wait(lg=tc[3])
        pre = self.pass2_pre(L)
        for n in range(8):
            A.wait(lg=tc[n]); self.csum(acc, abase + 4*n, n == 0, True)
        return pre

    def phi_ops(self, acc, e, dst, n):
        return ([f'v_exp_f32_e64 v{e+i}, v{acc+i} clamp' for i in range(n)] +
                [f'v_pk_fma_f32 {vr(acc+2*i,2)}, {vr(acc+2*i,2)}, s[86:87], s[86:87] op_sel:[0,0,1] op_sel_hi:[1,0,1]' for i in range(n//2)] +
                [f'v_max_f32 v{acc+i}, s87, v{acc+i}' for i in range(n)] +
                [f'v_pk_add_f32 {vr(acc+2*i,2)}, {vr(acc+2*i,2)}, {vr(e+2*i,2)}' for i in range(n//2)] +
                [f'v_cvt_pk_bf16_f32 v{dst+i}, v{acc+2*i}, v{acc+2*i+1}' for i in range(n//2)])

    def preA(self, L):
        la = L // 2
        return [f's_mul_i32 s91, {sW}, {3072 if L else 4096}\nv_add_u32 v14, s91, {vMISC}',
                f's_lshl_b32 s91, {sW}, 10\nv_add_u32 v13, s91, {vMISC}',
                f's_add_u32 s88, {sNON}, {16+L}', f's_mov_b32 s84, {sEXP}' if L == 0 else f's_add_u32 s32, s32, {PAIR}\ns_addc_u32 s33, s33, 0',
                f's_mov_b32 s86, {hx(f2u(LN2))}\ns_mov_b32 s87, {hx(f2u(1e-6))}',
                f's_cmp_eq_u32 {sW}, {3 if L else 4}\ns_cselect_b32 s91, 0x40000000, 0\nv_add_u32 v15, s91, {vL16}'] + self.selector()

    def epiKA(self, L):
        KE = []
        for u in range(2):
            KE += [f'v_pk_mul_f32 {vr(AK+2*i,2)}, {vr(AK+2*i,2)}, {vr(AQ+2*i,2)}' for i in range(4*u, 4*u+4)]
            if u: KE.append(lambda: self.csum(QF+4, WF, True))
            KE += self.phi_ops(AK+8*u, WF+8, WF+4*u, 8)
        return KE

    def layerA(self, L):
        A = self.A; P = self.p
        self.stamp(f'L{L} pass1')
        self.bpop(P.get('e1', 2))
        pre = self.pass2_pre(L) if L else {}
        self.pop(self.KE, 99)
        for i in range(8): A(f'v_pk_mul_f32 {vr(AV+2*i,2)}, {vr(AV+2*i,2)}, {vr(AQ+2*i,2)}')
        self.csum(QF+4, WF+4, False)
        G, PS = AV, AK
        for i in range(8):
            A(f'v_cvt_pk_bf16_f32 v{WF+8+i}, v{AV+2*i}, v{AV+2*i+1}')
            if i == 5: self.mfma(AK, WF, WF+8, None)
        A(f'v_mov_b32 v{G+10}, v{QF+4}')
        self.stamp(f'L{L}.phik')
        self.mfma(AK, WF+4, WF+12, AK)
        s0 = 0; gaps = P.get('gaps', (2, 1, 2, 3, 1)) if L else (0,)*5
        def qs(k):
            nonlocal s0
            for _ in range(gaps[k]): self.p2_step(L, s0, pre); s0 += 1
        qs(0)
        if L == 0:
            self.bpop(0, 'rls')
            for b in range(3): A(f's_lshr_b32 s91, {sC}, 2\ns_cmp_eq_u32 s91, {b}\ns_cselect_b32 s91, -1, 0\nv_and_b32 v{G+12+b}, s91, v{RES}')
            A(f'ds_write_b96 v14, {vr(G+12,3)} offset:3072')
        for i in range(8):
            A(f'v_cndmask_b32_e64 v{G+4*(i//3)+i%3}, v{AK+i}, v{AK+8+i}, {sHALF}')
            if i in (2, 5): A(f'ds_write_b96 v14, {vr(G+4*(i//3),3)} offset:{1024*(i//3)}')
            if i == 2: qs(1)
        tg_ = A(f'ds_write_b96 v14, {vr(G+8,3)} offset:2048')
        A(f'v_mov_b32 v{PS+3}, s88')
        qs(2)
        if L == 0:
            self.bpop(0, 'wq')
            A.wait(vm=max(self.tk['wq'], self.tk['rls']))
        self.stamp(f'L{L}.preB1')
        A.wait(lg=tg_); A('s_barrier')
        self.stamp(f'L{L}.B1')
        t = [A(f'ds_read_b96 {vr(PS+4*p,3)}, v13 offset:{(3072 if L else 4096)*p}') for p in range(4)]
        qs(3)
        if L == 0: A(f's_cmp_eq_u32 {sW}, 3')
        for p in range(1, 4):
            A.wait(lg=t[p])
            A(f'v_pk_add_f32 {vr(PS,2)}, {vr(PS,2)}, {vr(PS+4*p,2)}'); A(f'v_add_f32 v{PS+2}, v{PS+2}, v{PS+4*p+2}')
        if L == 0:
            lb = A.lab('csb')
            A(f's_cbranch_scc0 {lb}'); A('s_mov_b32 exec_lo, 0')
            for i in range(3): A(f'v_cvt_pk_bf16_f32 v{PS+4+i}, v{PS+i}, v{PS+i}')
            for i in range(3): A(f'v_lshlrev_b32 v{PS+4+i}, 16, v{PS+4+i}')
            for i in range(3): A(f'v_sub_f32 v{PS+i}, v{PS+i}, v{PS+4+i}')
            A('s_mov_b32 exec_lo, -1'); A(f'{lb}:')
        A(f'v_cvt_pk_bf16_f32 v{PS}, v{PS}, v{PS+1}')
        qs(4)
        A(f'v_permlane32_swap_b32 v{PS+2}, v{PS+4}'); A(f'v_permlane32_swap_b32 v{PS}, v{PS+1}')
        A(f'v_cvt_pk_bf16_f32 v{PS+2}, v{PS+2}, v{PS+4}')
        A('s_mov_b32 exec_hi, 0')
        A(f'buffer_store_dwordx4 {vr(PS,4)}, v15, {S_PL}, {sPST} offen sc1')
        A('s_mov_b32 exec_hi, -1')
        self.stamp(f'L{L} part')
        self.open.add('part'); self.bpop(P.get('a0', 1))
        F = []
        if L == 0:
            pre = self.colsum_q(L, QA, AK+8)
            F = [''] + self.cs_write(AK+8, QF+4, 'v17', 2*1024) + [''] * 6 + ['s_barrier']
            W = []
        elif P.get('kvdma'):
            W = []
            for g in range(4):
                for b in range(2):
                    l = self.rl_dma(g, b, (WK, WV)[b])[0].split('\n'); l = [x.replace('s93', 's85') for x in l]
                    W += ['\n'.join(l[:-1]), l[-1]]
        else: W = self.kv_write(KVB_A)
        S = [f's_mul_i32 s91, {sW}, 12\ns_add_u32 s91, s91, {TOT}\nv_lshl_add_u32 v14, {vLANE}, 5, s91',
             f'v_and_b32 v15, 3, {vLANE}\nv_bfe_u32 v16, {vLANE}, 2, 1', 'v_lshl_add_u32 v15, v16, 3, v15\n' f'v_bfe_u32 v16, {vLANE}, 3, 1',
             'v_lshl_add_u32 v15, v16, 2, v15\n' f'v_bfe_u32 v16, {vLANE}, 4, 1', 'v_lshl_add_u32 v15, v16, 7, v15\nv_lshlrev_b32 v15, 2, v15',
             f'v_add_u32 v15, {ZOF}, v15\nv_add_u32 v16, 8, v14',
             f's_cmp_eq_u32 {sW}, 2\ns_cselect_b64 vcc, -1, 0\nv_cndmask_b32 v15, v16, v15, vcc\nv_lshrrev_b32 v16, 5, {vLANE}',
             f'v_lshlrev_b32 v16, 5, v16\nv_add_u32 v16, {ZOF}, v16', f'v_lshlrev_b32 v13, 5, {vLANE}\nv_add_u32 v13, {TOT}, v13',
             f'v_cndmask_b32_e64 v16, v13, v16, {sHALF}\ns_cmp_eq_u32 {sW}, {3 if L else 4}\ns_cselect_b64 vcc, 0, -1',
             f's_mul_i32 s89, {sSLOW}, {L+1}\ns_add_u32 s89, s89, {sOWA}\ns_add_u32 {sEXP}, {sNON}, {8+L}']
        SEL, GA = AV+4, XR+40
        def lm(f): return hx(sum(1 << l for l in range(32) if f(l & 15, l >> 4)))
        act = lambda m, g: g == ((m >> 2) & 1)
        S2 = [f's_mov_b32 s92, {lm(lambda m, g: (m & 3) == 1 or ((m & 3) == 2 and m >> 3))}\ns_mov_b32 s93, s92\n'
              f'v_mov_b32 v{SEL+3}, 0x3f80\nv_cndmask_b32_e64 v{SEL+3}, v{SEL+3}, 1.0, s[92:93]']
        for k in range(3):
            f = (lambda m, g, k=k: act(m, g) and (m & 3) < 2 and (m >> 3) == k) if k < 2 else (lambda m, g: act(m, g) and (m & 3) == 2)
            S2.append(f's_mov_b32 s92, {lm(f)}\ns_mov_b32 s93, s92\nv_cndmask_b32_e64 v{SEL+k}, 0, v{SEL+3}, s[92:93]')
        S2.append(f'v_mov_b32 v{SEL+3}, 0')
        def gtxt(p):
            return f'buffer_load_dwordx4 {vr(XR+4*p,4)}, {vL16}, {S_PL}, {sGOF[p]} offen sc1'
        tg = {}; A.nreg += 1; reg = A.nreg
        def gl(p):
            l = A.lab('g3')
            A(f's_cbranch_vccz {l}')
            A.stack.append(reg); tg[p] = A(gtxt(p)); A.stack.pop()
            A(f'{l}:')
        GL = [lambda p=p: gl(p) for p in range(8)]
        gs = list(P.get('gs', [26,28,30,32]) if L else P.get('gs0', [22,24,26,28,30,32]))
        nS = len(S); S += S2
        at = {s0 + s: [S[s]] for s in range(len(S))}
        if L == 0:
            for s in P.get('p2b', range(0, 20, 2)): at.setdefault(s, []).append(lambda: self.bpop(1))
            at.setdefault(gs[0] - 1, []).append(lambda: self.bpop(0, 'wo0'))
        else:
            for s in P.get('kvp2', range(1, 24, 2)): assert s0 + s <= 32; at.setdefault(s0 + s, []).append(W.pop(0))
        for k, s in enumerate(gs):
            assert s > k and s >= s0 + nS
            at.setdefault(s, []).append(GL.pop(0))
        self.pass2(L, F, pre, at=at, s0=s0)
        self.stamp(f'L{L} pass2')
        self.pop(GL, 1)
        for i in range(8): A(f'v_pk_mul_f32 {vr(AQ+2*i,2)}, {vr(AQ+2*i,2)}, v[8:9] op_sel_hi:[1,0]')
        for k, o in enumerate(self.phi_ops(AQ, WF+16, QF, 16)):
            A(o)
            if k % 6 == 5: self.pop(GL, 1)
        assert not GL
        self.open.add('gath'); self.bpop(P.get('g3', 6))
        self.pop(W, 99 if L == 0 else P.get('kvg', 4))
        self.stamp(f'L{L}.phiq')
        lre = A.lab('gather'); lj = A.lab('gatherj'); l3 = A.lab('gather3')
        gx = lambda p: f'v_xor_b32 v{XR+4*p+3}, s88, v{XR+4*p+3}'
        gm = lambda p: f'v_mfma_f32_16x16x32_bf16 {vr(GA,4)}, {vr(SEL,4)}, {vr(XR+4*p,4)}, {vr(GA,4) if p else 0}'
        T_ = GA; tv = XR + 32
        chk = [f'v_or3_b32 v{tv}, v{XR+3}, v{XR+7}, v{XR+11}', f'v_or3_b32 v{tv}, v{tv}, v{XR+15}, v{XR+19}',
               f'v_or3_b32 v{tv}, v{tv}, v{XR+23}, v{XR+27}', f'v_or_b32 v{tv}, v{tv}, v{XR+31}',
               f'v_cmp_ne_u32 vcc, 0, v{tv}' if 'gchk' not in P.get('x', '') else f'v_cmp_ne_u32 vcc, v{tv}, v{tv}']
        A(f's_cbranch_vccz {l3}')
        A.cond_begin(); A.stack.append(reg)
        A.wait(vm=tg[1]); A(gx(0)); A(gx(1))
        for p in range(8):
            if p + 2 < 8: A.wait(vm=tg[p+2]); A(gx(p+2))
            A(gm(p))
        A(f'{lj}:')
        for l in chk: A(l)
        lok = A.lab('gok')
        inl = P.get('inl', 3) & 2
        A(f's_cbranch_vccz {lok}' if inl else f's_cbranch_vccnz {lre}')
        pos = len(A.L)
        A(f'{lok}:')
        if L == 0: A(f's_cmp_eq_u32 {sW}, 3'); A(f's_cbranch_scc1 {l3}')
        A(f'ds_write2_b32 v14, v{T_}, v{T_+1} offset0:0 offset1:1')
        A(f'ds_write_b32 v15, v{T_+2}')
        A.stack.pop(); A.cond_end()
        A(f'{l3}:')
        tl = [f'{lre}:', f's_add_u32 {sSPIN}, {sSPIN}, 1', f's_cmp_lt_u32 {sSPIN}, {SPIN_LIMIT}', f's_cbranch_scc0 {lok}']
        for p in range(8):
            l = A.lab('gs')
            tl += [f'v_cmp_ne_u32 vcc, 0, v{XR+4*p+3}', gx(p), f's_cbranch_vccz {l}'] + gtxt(p).split('\n') + [f'{l}:']
        tl += ['s_waitcnt vmcnt(0)'] + [gx(p) for p in range(8)] + [gm(p) for p in range(8)]
        tl += [f's_branch {lj}']
        if inl: A.L[pos:pos] = tl
        else: A.tail += tl
        if L == 0: A.wait(vm=self.tk['wo0'])
        self.stamp(f'L{L}.preB2')
        self.barrier(); self.open.add('b2')
        self.stamp(f'L{L} gather')
        t = {}
        for H in range(2):
            A(f'ds_read_b128 {vr(WF+8*H,4)}, v16 offset:{512*H}'); t[H] = A(f'ds_read_b128 {vr(WF+8*H+4,4)}, v16 offset:{512*H+16}')
        R1 = self.wo_write(WOA, 1)
        if L == 0:
            self.bpop(P.get('g0', 0), 'wo1'); self.bpop(0, 'res')
            def cst():
                l = A.lab('cst')
                A(f's_cmp_eq_u32 {sW}, 3'); A(f's_cbranch_scc0 {l}')
                A.cond_begin()
                for b in range(3):
                    q = XR + 44 + 4*b
                    self.pop(self.cs_write(T_+b, q, '', 0)[:-1] + [f'v_mov_b32 v{q+2}, 0', f'v_mov_b32 v{q+3}, 0',
                             f'ds_write_b128 {vMISC}, {vr(q,4)} offset:{CST-MISC+(3+b)*1024}'], 99)
                A.cond_end(); A(f'{l}:')
            R1 = [lambda: A.wait(vm=max(self.tk['wo1'], self.tk['res'])), self.res_read] + R1[:2] + [self.res_unpack] + R1[2:] + [cst] + self.x_switch()
        A(f'v_mov_b32 v12, {sEXP}'); A(f'v_mov_b32 v13, {sEXP}'); A(f'v_mov_b32 v14, {hx(f2u(LOG2E))}')
        self.op_addr(L)
        for H in range(2):
            A.wait(lg=t[H])
            for i in range(4): A(f'v_cvt_pk_bf16_f32 v{WF+16+4*H+i}, v{WF+8*H+2*i}, v{WF+8*H+2*i+1}')
            self.mfma(AK + 16*H, WF+16+4*H, QF+4*H, None)
        for H in range(2):
            a = AK + 16*H
            A(f'v_fmaak_f32 v{a+8}, v{a+8}, v14, {hx(f2u(1e-6*LOG2E))}')
            A(f'v_rcp_f32 v{a+8}, v{a+8}')
            for i in range(4): A(f'v_pk_mul_f32 {vr(a+2*i,2)}, {vr(a+2*i,2)}, {vr(a+8,2)} op_sel_hi:[1,0]')
            for i in range(4): A(f'v_cvt_pk_bf16_f32 v{AQ+4*H+i}, v{a+2*i}, v{a+2*i+1}')
            t = self.moded([f'buffer_store_dwordx4 {vr(AQ+4*H,4)}, {vL16}, {S_WS}, s89 offen offset:{1024*H}'], through=(L == 0 and P.get('fs', 0) & 1))
        self.stamp(f'L{L}.ost')
        self.bpop(P.get('g1', 2))
        return t, [f'buffer_store_dwordx2 v[12:13], {vF4}, {S_WS}, {sOFA} offen'], R1, W

    def op_addr(self, L):
        A = self.A
        A(f'v_and_b32 v16, 48, {vLANE}'); A(f'v_lshl_add_u32 v15, v16, 4, {vL16}')
        A(f'v_and_b32 v16, 16, {vLANE}'); A(f'v_mad_u32_u24 v16, v16, 48, {vL16}')
        if L < 1:
            A(f'v_bfe_u32 v{MU+1}, {vLANE}, 2, 3'); A(f'v_lshlrev_b32 v{MU}, 7, v{MU+1}')
            A(f'v_lshrrev_b32 v{MU+1}, 1, v{MU+1}'); A(f'v_lshl_add_u32 v{MU}, v{MU+1}, 5, v{MU}')
            A(f'v_and_b32 v{MU+1}, 3, {vLANE}'); A(f'v_lshl_add_u32 v{MU}, v{MU+1}, 3, v{MU}')
            A(f'v_lshrrev_b32 v{MU+1}, 5, {vLANE}'); A(f'v_or_b32 v{MU+1}, 32, v{MU+1}'); A(f'v_lshl_add_u32 v{MU}, v{MU+1}, 11, v{MU}')
            for f in range(1, 4): A(f'v_xor_b32 v{MU+f}, {32*f}, v{MU}')
        else: A(f'v_add_u32 v{MU}, 0x10000, {vL16}')
        A(f's_add_u32 {sOR}, {sOR}, {sSLOW}')

    def outproj(self, L, tost, oflags, R1, W):
        A = self.A; last = (L == self.nl - 1); P = self.p
        early_bar = (L == 1) or (L == 3 and P.get('early', 1))
        SV = {0: self.wo_save(WOA), 1: [f'ds_read_b128 {ar(WOB+4*n,4)}, {vBKO} offset:{self.wo_off(n)-65536}' for n in range(16)]}.get(L, [])
        RING = [XR+64+4*i for i in range(16)] + [WF+4*i for i in range(8)] + [AK+4*i for i in range(8)]
        to = {}; tw = {}; nr = 0
        def rd(k):
            nonlocal nr
            for _ in range(k):
                if nr >= 64: return
                m = nr; S_, f = m >> 2, m & 3
                o = self.wo_off(S_ & 12) - 65536 + 4096*(S_ & 3)
                if L < 1: tw[m] = self.tr(RING[m & 31], f'v{MU+f}', o, 1024)
                else: tw[m] = A(f'ds_read_b128 {vr(RING[m & 31],4)}, v{MU} offset:{o+1024*f}')
                nr += 1
        self.pop(R1, P.get('r1a', 5))
        nto = 'noof' in P.get('x', '') and L >= 1; ntx = 'noxf' in P.get('x', '') and L >= 1
        if not nto: self.flag(tost, oflags)
        elif L == 1: A.wait(vm=tost)
        self.bpop(P.get('g2', 2))
        if not nto: self.probe_(sOFR, 12)
        self.stamp(f'L{L} opub')
        self.pop(R1, 99)
        if early_bar: self.barrier()
        rd(P.get('on0', 10))
        self.stamp(f'L{L}.prepoll')
        if not nto: self.spin(sOFR, 12)
        self.stamp(f'L{L} opoll'); self.open.add('opoll')
        def ldo(s):
            if s % 4 == 0: A(f's_add_u32 s90, {sOR}, {sCH[s//4]}')
            if s % 4 == 2: A('s_add_u32 s90, s90, 4096')
            to[s] = A(f'buffer_load_dwordx4 {vr(XR+4*s,4)}, v15, {S_WS}, s90 offen offset:{(s%2)*2048} sc1')
        D = 8
        for s in range(D):
            ldo(s)
            if s >= 1: rd(P.get('on1', 3))
        assert nr <= 32
        if last: S = [self.row_tile() + '\ns_mov_b32 s84, s91\ns_add_u32 s85, s91, 8192', self.row_lds(17, 0), self.row_voff(13, 14)]
        else: S = [f's_add_u32 {sXO}, {sXO}, {sSLOW}\ns_add_u32 {sST}, {sST}, {sSLOW}\ns_add_u32 {sXW}, {sXW}, {sSLOW}\ns_add_u32 {sSW}, {sSW}, {sSLOW}',
                   f's_add_u32 {sEXP}, {sNON}, {L+1}\nv_mov_b32 v{QF+4}, {sEXP}\nv_mov_b32 v{QF+5}, {sEXP}',
                   f's_not_b64 s[86:87], {sHALF}\ns_bitcmp1_b32 {sW}, 0\ns_cselect_b64 s[86:87], {sHALF}, s[86:87]']
        barred = early_bar
        if last: self.pop(S, 99)
        ts = P.get('ts', 16)
        mm = lambda s, f: A(f'v_mfma_f32_16x16x32_bf16 {vr(RES+4*f,4)}, {vr(RING[(4*s+f) & 31],4)}, {vr(XR+4*s,4)}, {vr(RES+4*f,4)}')
        for s in range(16):
            A.wait(vm=to[s], lg=tw[4*s+3])
            if s in (0, 8, 15): self.stamp(f'L{L}.ops{s}')
            for f in range(4):
                m = 4*s + f
                if s < ts or f < 2: mm(s, f)
                if nr == 32 and not barred: A('s_barrier'); barred = True
                if nr <= m + 32 and (s >= D or f in P.get('rdp', (0, 2))): rd(1)
                if f == 1:
                    if s + D < 16: ldo(s+D)
                    elif s in P.get('opb', (8, 10, 12, 14)): self.bpop(1)
                if nr >= 64 and f == 3:
                    if S: self.pop(S, 1)
                    elif not W: self.pop(SV, 2)
                if s >= P.get('ows', 8) and f == 2 and s < P.get('owe', 15): self.pop(W, 1)
        self.pop(S, 99)
        def pub(F_):
            q = AQ + 4*F_
            def st():
                if last: A(f'ds_write_b128 v{17+F_}, {vr(q,4)}')
                else: self.tk['xs'] = self.moded([f'buffer_store_dwordx4 {vr(q,4)}, v16, {S_XB}, {sXW} offen offset:{2048*F_}'], through=(L == 0 and P.get('fs', 0) & 2))
            return ([f'v_cvt_pk_bf16_f32 v{q+k}, v{RES+8*F_+2*k}, v{RES+8*F_+2*k+1}' for k in (0, 2, 1, 3)] +
                    [f'v_permlane16_swap_b32 v{q+i}, v{q+2+i}' for i in range(2)] + [st])
        p0 = pub(0); rest = [(s, f) for s in range(ts, 16) for f in (2, 3)]
        for k, (s, f) in enumerate(rest):
            mm(s, f)
            if k >= 2: self.pop(p0, 2)
        if rest: self.pop(p0, 99); self.pop(pub(1), 99)
        else:
            p1 = pub(1); self.pop(p0, 4); self.pop(p1, 4); self.pop(p0, 99); self.pop(p1, 99)
        t = self.tk.get('xs')
        if last:
            tt = [A(f'ds_read_b128 {vr(AQ+8+4*i,4)}, {vBK0} offset:{1024*i}') for i in range(2)]
            for i in range(2):
                A.wait(lg=tt[i]); A(f'buffer_store_dwordx4 {vr(AQ+8+4*i,4)}, v13, {S_OUT}, s{84+i} offen')
        if last:
            self.stamp(f'L{L} out')
            return
        self.stamp(f'L{L}.xst')
        A(f'v_pk_add_f32 v[12:13], {vr(RES,2)}, {vr(RES+2,2)}'); A(f'v_pk_mul_f32 v[14:15], {vr(RES,2)}, {vr(RES,2)}')
        A(f'v_pk_fma_f32 v[14:15], {vr(RES+2,2)}, {vr(RES+2,2)}, v[14:15]')
        E = ([] if P.get('kvdma') else self.kv_save(KVB_A)) if L == 0 else self.q_write(QB if L % 2 == 0 else QA) + self.wo_write(WOA if L % 2 == 1 else WOB, 0)
        def chore():
            if W: self.pop(W, 1)
            else: self.pop(SV, 3)
        for i in range(2, 8):
            A(f'v_pk_add_f32 v[12:13], v[12:13], {vr(RES+2*i,2)}'); A(f'v_pk_fma_f32 v[14:15], {vr(RES+2*i,2)}, {vr(RES+2*i,2)}, v[14:15]')
            if i in (3, 6): chore()
        A('v_add_f32 v12, v12, v13'); A('v_add_f32 v14, v14, v15')
        A('v_permlane32_swap_b32 v12, v14'); A('v_add_f32 v12, v12, v14')
        A('v_mov_b32 v13, v12'); A('v_permlane16_swap_b32 v12, v13'); A('v_add_f32 v12, v12, v13')
        A('v_or_b32 v12, 1, v12' if (L + 1) & 1 else 'v_and_b32 v12, -2, v12')
        sst = ['s_mov_b64 exec, s[86:87]', f'buffer_store_dword v12, {vL16}, {S_WS}, {sSW} offen']
        xfl = f'buffer_store_dwordx2 {vr(QF+4,2)}, {vF4}, {S_WS}, {sXFW} offen'
        stl = P.get('stl', 0)
        if not stl: self.moded(sst); A('s_mov_b64 exec, -1')
        self.stamp(f'L{L}.stst')
        self.bpop(P.get('x1', 2))
        for _ in range(P.get('xch', 2)): chore()
        if stl:
            n_ = len(A.L); A.wait(vm=t); w_ = A.L[n_:]; del A.L[n_:]
            self.moded(['s_mov_b64 exec, 1'] + w_ + [xfl] + sst, sst + ['s_waitcnt vmcnt(0)', 's_mov_b64 exec, 1', xfl])
            A('s_mov_b64 exec, -1')
        elif not ntx: self.flag(t, [xfl])
        if L == 0:
            self.bpop(P.get('x2', 0), 'kvB')
        if not ntx: self.probe_(sXF, 16)
        self.stamp(f'L{L} xpub')
        self.pop(W, 99); self.pop(SV, 99)
        if L == 0: A(f'v_mov_b32 {vTR0}, {vL16}'); A(f'v_add_u32 {vTR1}, 0x10000, {vL16}')
        if L == 0:
            self.pop(self.setupB(), 9)
            A.wait(vm=self.tk['kvB'])
        self.barrier(); self.open.add('bx')
        tw = {}
        self.p1_rd(0, L+1, tw); self.p1_rd(1, L+1, tw)
        if L % 2 == 0:
            if P.get('warm', 0): A(f's_branch L_warm{L+1}')
            A(f'L_warmb{L+1}:')
        self.pop(E, P.get('xch2', 2))
        if not ntx: self.spin(sXF, 16)
        self.stamp(f'L{L} xpoll')
        return tw, E

    def treg(self, t): return XR + 12*(t if t >= 0 else (3 - t if t >= -4 else -5 - t))
    def preB(self, L):
        Q = [f's_mul_i32 s91, {sW}, {REC}\nv_add_u32 v12, s91, {vMISC}',
             f'v_lshrrev_b32 v15, 3, {vLANE}\nv_lshl_add_u32 v15, v15, 10, v12', f'v_mov_b32 v{QF+4}, {sNON}']
        Q += self.ones_slot(QF)
        Q += [f's_lshl1_add_u32 s8, {sSLOW}, s8\ns_lshl1_add_u32 s9, {sSLOW}, s9']
        return Q
    def setupB(self):
        return [f's_lshl_b32 s91, {sJ}, 6\ns_add_u32 s91, s91, {sTB}\ns_mul_i32 {sREC}, s91, {REC}\ns_add_u32 {sREC}, {sREC}, {KVB}\n'
                f's_lshl_b32 {sKF}, s91, 7\ns_add_u32 {sKF}, {sKF}, {KVF}\n'
                f's_sub_u32 s91, s91, {sW}\ns_lshl_b32 {sHF}, s91, 7\ns_add_u32 {sHF}, {sHF}, {KVF - 1024}\n'
                f's_mul_i32 s91, s91, {REC}\n' + '\n'.join(f's_add_u32 s{12+t}, s91, {KVB - (t+1)*REC}' for t in range(8)),
                f's_cmp_ge_u32 {sC}, 2\ns_cselect_b32 s52, 15, 0\ns_cselect_b32 {sINV[1]}, 0, 0x40000000\n'
                f's_cmp_ge_u32 {sC}, 1\ns_cselect_b32 s53, 0xf0, 0\ns_cselect_b32 {sINV[0]}, 0, 0x40000000\ns_or_b32 s52, s52, s53\ns_mov_b32 s53, 0',
                f's_lshr_b32 s91, {sJ}, 1\ns_lshl_b32 s91, s91, 16\ns_add_u32 s91, s91, {sW12}\ns_add_u32 {sRO}, s91, {RLO}',
                f's_lshr_b32 s92, {sW}, 1\ns_xor_b32 {sP}, s92, {sW}\ns_and_b32 {sP}, {sP}, 1\ns_lshl1_add_u32 s92, {sJ}, s92\n'
                f's_sub_i32 s91, {sP}, {sW}\ns_lshl_b32 s91, s91, 5\ns_add_u32 s91, s91, s92\n'
                f's_lshl_b32 s8, s91, 10\ns_add_u32 s8, s8, {sOO}\ns_lshl2_add_u32 s10, s91, {sOF}\n'
                f's_cmp_eq_u32 {sP}, 1\ns_cselect_b32 s91, 1, 3\ns_lshl_b32 s92, s91, 15\ns_add_u32 s9, s8, s92\ns_lshl_b32 s92, s91, 7\ns_add_u32 s11, s10, s92']

    KVO = [0, 1024, 2048, 3200]
    def kv_pack(self, k):
        a = AK + 8*k
        sc = lambda i: 'v[8:9] op_sel_hi:[1,0]' if k < 2 else vr(AQ+8*(k-2)+2*i, 2)
        return ([f'v_pk_mul_f32 {vr(a+2*i,2)}, {vr(a+2*i,2)}, {sc(i)}' for i in range(4)] +
                [f'v_cvt_pk_bf16_f32 v{WF+4*k+i}, v{a+2*i}, v{a+2*i+1}' for i in range(4)] +
                [f'buffer_store_dwordx4 {vr(WF+4*k,4)}, {vL16}, {S_PL}, {sREC} offen offset:{self.KVO[k]} sc1'])
    def kv_lds(self, k): return f'ds_write_b128 v12, {vr(WF+4*k,4)} offset:{self.KVO[k]}'
    def epiKB(self, L):
        pre = [lambda: self.bpop(0, 'qB')] if L == 1 else []
        return pre + self.kv_pack(0) + self.kv_pack(1) + [self.kv_lds(0), self.kv_lds(1),
               f's_mov_b64 exec, 0xffff\nds_write_b128 v15, {vr(QF,4)} offset:3072\ns_mov_b64 exec, -1']

    def layerB(self, L):
        A = self.A; last = (L == self.nl - 1)
        self.stamp(f'L{L} pass1')
        if L == 1: self.bpop(0, 'qB'); A.wait(vm=self.tk['qB']); A('s_barrier')
        pre = self.pass2_pre(L)
        self.pop(self.KE, 99)
        self.pop(self.kv_pack(2) + self.kv_pack(3), 99); tst = A.tok()
        KW = [self.kv_lds(2), lambda: None, self.kv_lds(3)]
        self.stamp(f'L{L} kvpub')
        MD, MF = AK, AV
        F = []
        F += [f's_lshr_b32 s92, {sW}, 1\ns_lshl_b32 s91, s92, 10\nv_add_u32 v17, s91, {vL16}',
              f's_lshr_b32 s92, {sW}, 1\ns_lshl_b32 s91, s92, 8\nv_add_u32 v18, s91, {vL16}',
              f'v_and_b32 v16, 11, {vLANE}\nv_min_u32 v16, 1, v16\nv_or_b32 v16, 64, v16', f'v_lshlrev_b32 v16, 4, v16\nv_cndmask_b32_e64 v18, v18, v16, {sHALF}',
              f'v_add_u32 v14, {MISC}, v17\nv_add_u32 v15, {MISC}, v18',
              f'v_mul_f32 {vRSTD}, {hx(f2u(0.25*LOG2E))}, {vRSTD}\nv_mov_b32 v16, 0xff800000',
                            f'v_lshrrev_b32 v{QF+5}, 5, {vLANE}\nv_mad_i32_i24 v{QF+5}, v{QF+5}, -16, {vF4}']
        cmp_ = lambda r: f'v_cmp_le_i32 vcc, {4*(8*(r>>2)+(r&3))}, v{QF+5}'
        F[-1] += f'\nv_mov_b32 v{QF+6}, 0\n' + cmp_(0)
        for r in range(16):
            F.append(f'v_cndmask_b32 v{MD+r}, v16, v{QF+6}, vcc\nv_cndmask_b32 v{MF+r}, 0, v16, vcc' + ('\n' + cmp_(r+1) if r < 15 else ''))
        def flag():
            if 'nodrain' not in self.p.get('x', ''): A.wait(vm=tst)
            A(f'buffer_store_dword v{QF+4}, {vF4}, {S_PL}, {sKF} offen sc1')
        at = {12: ['s_barrier']}
        if L == 1:
            for i, o in enumerate(self.q_save(QB)): at.setdefault(4 + i, []).append(o)
        k0 = 17
        for t in range(4):
            r = self.treg(t)
            at[k0+3*t] = [f'ds_read_b128 {vr(r,4)}, v14 offset:{REC*t}']
            at[k0+1+3*t] = [f'ds_read_b128 {vr(r+4,4)}, v15 offset:{REC*t+2048}']
            at[k0+2+3*t] = [f'ds_read_b128 {vr(r+8,4)}, v15 offset:{REC*t+3200}']
        at[30] = [f'v_add_u32 v16, {sINV[0]}, v17\nv_add_u32 v12, {sINV[0]}, v18']
        if self.p.get('probe_s'):
            at.setdefault(self.p['probe_s'], []).append(lambda: self.tk.__setitem__('hp', A('\n'.join(self.hprobe()))))
        if L == 3:
            def ep():
                A.cond_begin(); A(self.epoch()); A.cond_end()
            at.setdefault(14, []).append(ep)
        at.setdefault(self.p['flag_at'] if L == 3 else self.p.get('flag_at1', 18), []).append(flag)
        self.pass2(L, F, pre, at=at, before=KW)
        self.stamp(f'L{L}.p2end')
        lw = [A.lab(f'att{w}') for w in range(4)]; lj = A.lab('attj')
        for w in (1, 2, 0): A(f's_cmp_eq_u32 {sW}, {w}'); A(f's_cbranch_scc1 {lw[w]}')
        for P_ in range(2):
            lb_ = A.lab('attb')
            if P_: A(f'L_warm{L}:'); A(f's_branch L_warmb{L}')
            A(f'{lw[3-P_]}:')
            A.cond_begin(); self.attn(L, P_, 1, lb_); A.cond_end()
            A(f'{lw[P_]}:')
            A.cond_begin(); self.attn(L, P_, 0, lb_); A.cond_end()
            if not P_: A(f's_branch {lj}')
        A(f'{lj}:')
        early = self.p.get('early', 1) if L == 3 else self.p.get('early1', 0)
        if early:
            lf, lr = A.lab('fbb'), A.lab('fbbr')
            A('s_cmp_lg_u32 s86, 0'); A(f's_cbranch_scc1 {lf}'); A(f'{lr}:')
            A.tail += [f'{lf}:'] + self.fb_call(1) + self.fin_ops(1)
            l1_, l2_ = A.lab('fbs'), A.lab('fbt')
            st, fl = self.o_store(1), f'buffer_store_dword v13, {vF4}, {S_WS}, s11 offen'
            A.tail += [f's_cmp_lg_u32 {sMODE}, 0', f's_cbranch_scc1 {l1_}', st, 's_waitcnt vmcnt(0)', 's_mov_b64 exec, 1', fl, f's_branch {l2_}',
                       f'{l1_}:', st + ' sc1', 's_waitcnt vmcnt(0)', 's_mov_b64 exec, 1', fl + ' sc1', f'{l2_}:', 's_mov_b64 exec, -1', f's_branch {lr}']
        for X in ((0,) if early else (1, 0)):
            lf, lr = A.lab('fb'), A.lab('fbr')
            self.pop(self.chk_ops(X), 9)
            if self.force_fb: A(f's_branch {lf}')
            elif not self.p.get('x'): A(f's_cbranch_vccnz {lf}')
            A(f'{lr}:')
            A.tail += [f'{lf}:'] + self.fb_call(X) + [f's_branch {lr}']
            self.pop(self.fin_ops(X), 99)
            t = self.moded([self.o_store(X)])
        self.stamp(f'L{L}.ost')
        self.op_addr(L)
        R1 = [] if L == 1 else self.wo_write(WOB, 1)
        W = [] if last else self.kv_write(KVA)
        if L == 1: self.pop(W, self.p.get('w1a', 6))
        return t, [f'buffer_store_dword v13, {vF4}, {S_WS}, s{10+X} offen' for X in range(1 if early else 2)], R1, W

    def chk_ops(self, X):
        lo_b, hi_b = f2u(2.0**-64), f2u(2.0**64); a = WF + 16*X
        return [f'v_subrev_u32 v{a+9}, {hx(lo_b)}, v{a+8}', f'v_cmp_le_u32 vcc, {hx(hi_b - lo_b)}, v{a+9}']
    def fin_ops(self, X):
        a = WF + 16*X
        return ([f'v_rcp_f32 v{a+8}, v{a+8}'] + [f'v_pk_mul_f32 {vr(a+2*i,2)}, {vr(a+2*i,2)}, {vr(a+8,2)} op_sel_hi:[1,0]' for i in range(4)] +
                [f'v_cvt_pk_bf16_f32 v{AQ+8+4*X+i}, v{a+2*i}, v{a+2*i+1}' for i in range(4)])
    def o_store(self, X): return f'buffer_store_dwordx4 {vr(AQ+8+4*X,4)}, {vL16}, {S_WS}, s{8+X} offen'
    def fb_call(self, X):
        a = WF + 16*X
        return ([f'v_mov_b32 v{XR+12+i}, v{QF+4*X+i}' for i in range(4)] + [f's_sub_u32 s91, 3, {sP}' if X else f's_mov_b32 s91, {sP}'] +
                [f's_mul_i32 s90, s91, {REC}', 's_add_u32 s90, s90, s12', f's_add_u32 s90, s90, {REC}',
                 f's_lshl2_add_u32 s91, {sC}, s91', 's_call_b64 s[92:93], L_fallback', 's_nop 7', 's_nop 7'] +
                [f'v_mov_b32 v{a+i}, v{XR+16+i}' for i in range(9)])

    def hprobe(self): return ['s_mov_b64 exec, 0xff', f'buffer_load_dword v13, {vL128}, {S_PL}, {sHF} offen sc1', 's_mov_b64 exec, -1']
    def attn(self, L, P, H, lbody):
        A = self.A; treg = self.treg; w = 3 - P if H else P; again = P or not H
        a, b = (0, 3) if P == 0 else (1, 2)
        if P == 0:
            steps = [(0,0,'D'),(1,0,''),(1,1,''),(1,2,''),(1,3,'D')]
            far = [(1,-5,'F'),(0,-5,''),(0,-6,''),(0,-7,''),(0,-8,'F')]
        else:
            steps = [(0,0,''),(1,0,''),(0,1,'D'),(1,1,''),(1,2,'D')]
            far = [(1,-5,''),(1,-6,'F'),(0,-5,''),(0,-6,''),(0,-7,'F')]
        early = self.p.get('early', 1) if L == 3 else self.p.get('early1', 0)
        if early >= 2:
            nb = 1 + P
            steps += [(0,-1,''),(1,-1,''),(1,-2,''),(1,-3,''),(1,-4,'')] + far[:nb] + [(0,-2,''),(0,-3,''),(0,-4,'')] + far[nb:]
        else:
            for t in range(1, 5): steps += [(0,-t,''),(1,-t,'')]
            steps += far
        if H: steps[0], steps[1] = steps[1], steps[0]
        nlast = max(n for n, st in enumerate(steps) if st[0] == 1)
        nfar = 4 if P == 0 else 3
        S = [XR+96, XR+112]; PP = AQ; O = [WF, WF+16]; MD, MF = AK, AV
        tk = {}; tv = {}
        for hh in (1-H, H):
            for i in range(4*hh, 4*hh+4): A(f'v_pk_mul_f32 {vr(AQ+2*i,2)}, {vr(AQ+2*i,2)}, v[8:9] op_sel_hi:[1,0]')
            for i in range(4*hh, 4*hh+4): A(f'v_cvt_pk_bf16_f32 v{QF+i}, v{AQ+2*i}, v{AQ+2*i+1}')
            if hh != H: A(f'ds_write_b128 {vMISC}, {vr(QF+4*hh,4)} offset:{QL-MISC+1024*w}')
        A.wait(lg='all')
        tq = {H: None}
        def ldg(t):
            r = treg(t)
            so = f's{11-t}'
            def f0(): tk[t] = A(f'buffer_load_dwordx4 {vr(r,4)}, v16, {S_PL}, {so} offen sc1')
            def f1(): A(f'buffer_load_dwordx4 {vr(r+4,4)}, v12, {S_PL}, {so} offen offset:2048 sc1')
            def f2(): tv[t] = A(f'buffer_load_dwordx4 {vr(r+8,4)}, v12, {S_PL}, {so} offen offset:3200 sc1')
            return [f0, f1, f2]
        pr = self.hprobe()
        def qk(n):
            X, t, m = steps[n]
            if t < 0: assert t in tk
            A.wait(vm=tk.get(t), lg=tq[X])
            self.mfma(S[n & 1], treg(t), QF + 4*X, {'': None, 'D': MD, 'F': MF}[m])
        seen = set()
        def pv(n, u):
            X, t, m = steps[n]
            if t < 0: assert t in tv
            A.wait(vm=tv.get(t))
            c = O[X] if X in seen else None
            seen.add(X)
            self.mfma(O[X], treg(t) + 4 + 4*u, PP + 4*u, c)
        qk(0)
        A('s_barrier')
        tq[1-H] = A(f'ds_read_b128 {vr(QF+4*(1-H),4)}, {vMISC} offset:{QL-MISC+1024*(3-w)}')
        self.stamp(f'L{L} pass2', again)
        if self.p.get('probe_s'): tp = self.tk['hp']
        elif self.p.get('probe_i', -1) < 0:
            for l in pr: tp = A(l)
        F = []; G = []
        for n in range(18):
            s = S[n & 1]
            if n in self.p.get('attst', (2, 4, 5, 13)): self.stamp(f'L{L} att{n}', again if n <= 2 else P)
            if n == self.p['poll_n']:
                A.wait(vm=tp)
                if 'halo' not in self.p.get('x', ''): self.retry([f'v_cmp_ne_u32 vcc, {sNON}, v13'], pr, valid=sVAL, inline=self.p.get('inl', 3) & 1)
                for t in range(1, 5): F += ldg(-t)
            if n == 6:
                fl = []
                for t in range(5, 5 + nfar): fl += ldg(-t)
                def f00(f=fl[0]): A(f'v_add_u32 v16, {sINV[1]}, v17\nv_add_u32 v12, {sINV[1]}, v18'); f()
                F += [f00] + fl[1:]
            if L == 1:
                if n == 4: WB_ = self.wo_dma_rl('s85')
                k = self.p.get('wob', {10: 4, 13: 3, 14: 3, 15: 3, 16: 3}).get(n, 0)
                if k: F += WB_[:k] if not self.p.get('nowob') else []; WB_ = WB_[k:]
                if n == self.p.get('ct1', 11): F += [self.code_touch(15, vRSTD)]
            if n == 3: G += [f's_add_u32 {sEXP}, {sNON}, {8+L}\nv_mov_b32 v13, {sEXP}']
            for i in range(16):
                A(f'v_exp_f32 v{s+i}, v{s+i}')
                if early and n == nlast + 1 and i == 12:
                    self.pop(self.chk_ops(1) + self.fin_ops(1), 99)
                    A('s_or_b32 s86, vcc_lo, vcc_hi')
                    if self.force_fb: A('s_mov_b32 s86, 1')
                    if self.p.get('x'): A('s_mov_b32 s86, 0')
                    tb_ = self.moded([self.o_store(1)])
                if early and n == min(nlast + 3, 17) and i == 9:
                    l = A.lab('nof')
                    A('s_cmp_lg_u32 s86, 0'); A(f's_cbranch_scc1 {l}')
                    A.cond_begin(); self.flag(tb_, [f'buffer_store_dword v13, {vF4}, {S_WS}, s11 offen']); A.cond_end()
                    A(f'{l}:')
                if i == 0 and n > 0: A(f'v_cvt_pk_bf16_f32 v{PP+7}, v{S[1-(n&1)]+14}, v{S[1-(n&1)]+15}')
                if n == 0 and i == self.p.get('probe_i', -1):
                    for l in pr: tp = A(l)
                if i == (5 if n else 7) and n + 1 < 18: qk(n+1)
                if i >= 2 and i % 2 == 0: A(f'v_cvt_pk_bf16_f32 v{PP+(i-2)//2}, v{s+i-2}, v{s+i-1}')
                if i == 2 and n > 0: pv(n-1, 1)
                if i == 2 and n == 2:
                    if H: A(f's_branch {lbody}'); return
                    A(f'{lbody}:')
                if i == 11: pv(n, 0)
                if i in self.p.get('fslots1' if L == 1 and n >= 6 else 'fslots', (3, 8, 13)): self.pop(F, 1)
                if i == 15: self.pop(G, 1)
        A(f'v_cvt_pk_bf16_f32 v{PP+7}, v{s+14}, v{s+15}')
        pv(17, 1)
        self.stamp(f'L{L} att18', P)
        assert not F and not G and (L != 1 or not WB_)

    def fallback(self):
        T = []
        K, V0, V1, Q, O, S, PP, M = XR, XR+4, XR+8, XR+12, XR+16, XR+96, XR+32, XR+40
        T += ['L_fallback:', 's_nop 7', 's_nop 7', f'v_mov_b32 v{M}, 0xff800000']
        T += [f'v_mov_b32 v{O+i}, 0' for i in range(16)]
        for ps in range(2):
            T += ['s_mov_b32 s95, 0', 's_mov_b32 s94, s90', f'L_fb_loop{ps}:']
            T += [f'buffer_load_dwordx4 {vr(K,4)}, v17, {S_PL}, s94 offen sc1']
            if ps:
                T += [f'buffer_load_dwordx4 {vr(V0,4)}, v18, {S_PL}, s94 offen offset:2048 sc1',
                      f'buffer_load_dwordx4 {vr(V1,4)}, v18, {S_PL}, s94 offen offset:3200 sc1']
            T += ['s_waitcnt vmcnt(0)', 's_cmp_eq_u32 s95, 0', f's_cbranch_scc1 L_fb_d{ps}', 's_cmp_eq_u32 s95, 8', f's_cbranch_scc1 L_fb_f{ps}',
                  f'v_mfma_f32_32x32x16_bf16 {vr(S,16)}, {vr(K,4)}, {vr(Q,4)}, 0', f's_branch L_fb_j{ps}',
                  f'L_fb_d{ps}:', f'v_mfma_f32_32x32x16_bf16 {vr(S,16)}, {vr(K,4)}, {vr(Q,4)}, {vr(AK,16)}', f's_branch L_fb_j{ps}',
                  f'L_fb_f{ps}:', f'v_mfma_f32_32x32x16_bf16 {vr(S,16)}, {vr(K,4)}, {vr(Q,4)}, {vr(AV,16)}',
                  f'L_fb_j{ps}:']
            if ps == 0:
                T += [f'v_max3_f32 v{M}, v{M}, v{S+2*i}, v{S+2*i+1}' for i in range(8)]
            else:
                T += [f'v_sub_f32 v{S+i}, v{S+i}, v{M}' for i in range(16)]
                T += [f'v_exp_f32 v{S+i}, v{S+i}' for i in range(16)]
                T += [f'v_cvt_pk_bf16_f32 v{PP+i}, v{S+2*i}, v{S+2*i+1}' for i in range(8)]
                T += [f'v_mfma_f32_32x32x16_bf16 {vr(O,16)}, {vr(V0,4)}, {vr(PP,4)}, {vr(O,16)}',
                      f'v_mfma_f32_32x32x16_bf16 {vr(O,16)}, {vr(V1,4)}, {vr(PP+4,4)}, {vr(O,16)}', 's_nop 7', 's_nop 7']
            T += [f's_sub_u32 s94, s94, {REC}', 's_add_u32 s95, s95, 1', 's_cmp_gt_u32 s95, s91', f's_cbranch_scc1 L_fb_x{ps}',
                  's_cmp_le_u32 s95, 8', f's_cbranch_scc1 L_fb_loop{ps}', f'L_fb_x{ps}:']
            if ps == 0:
                T += [f'v_mov_b32 v{M+1}, v{M}', f'v_permlane32_swap_b32 v{M}, v{M+1}', f'v_max_f32 v{M}, v{M}, v{M+1}']
        T += ['s_setpc_b64 s[92:93]']
        return T

    def build(self):
        A = self.A
        if 'chore' in self.p.get('x', ''):
            self.q_write = lambda a: []; self.wo_write = lambda a, h: []; self.kv_write = lambda a: ['s_nop 0'] * 16
        hdr = open('interleave_layers__linear_attn_block__sliding_block__prompt.s.ref').read().split('\n')
        hdr = [l for l in hdr if l.startswith(';') and '@launch' not in l]
        for l in hdr: A.L.append(l)
        A(f'; @launch grid=(256,1,1) block=(256,1,1) lds={LDS_BYTES}')
        A('.amdgcn_target "amdgcn-amd-amdhsa--gfx950"'); A('.text'); A(f'.globl {KN}'); A('.p2align 8'); A(f'.type {KN},@function'); A(f'{KN}:')
        self.prologue()
        for L in range(self.nl):
            self.curL = L
            if L > 0: self.pass1(L, *nx)
            r = self.layerA(L) if L % 2 == 0 else self.layerB(L)
            nx = self.outproj(L, *r)
        if self.nl < 4: A(self.epoch())
        if self.probe:
            A.wait(vm='all')
            if self.probe == 'none': A('s_mov_b32 s79, 0')
            else: self.stamp('end')
            A('s_lshl_b32 s79, s79, 2'); A('s_add_u32 s79, s79, 10000')
            A('L_probe:'); A('s_memrealtime s[100:101]'); A('s_waitcnt lgkmcnt(0)'); A('s_sub_u32 s100, s100, s99'); A('s_cmp_lt_u32 s100, s79'); A('s_cbranch_scc1 L_probe')
        if self.debug:
            A.wait(vm='all'); self.stamp('end'); A('s_waitcnt lgkmcnt(0)'); self.stamp('end2')
            A(f's_lshl_b32 s91, {sTB}, 4'); A(f's_add_u32 s91, s91, {sJ}'); A('s_lshl_b32 s91, s91, 8'); A(f's_add_u32 s91, s91, {hx(STAMP)}')
            A(f'v_writelane_b32 {vDBG}, {sSPIN}, 62'); A(f'v_writelane_b32 {vDBG}, {sMODE}, 63')
            A(f'v_lshlrev_b32 v12, 2, {vLANE}'); A(f'buffer_store_dword {vDBG}, v12, {S_WS}, s91 offen')
        A('L_tailpad:')
        A('L_end:')
        A('s_endpgm')
        for l in A.tail: A.L.append(l)
        if self.nl > 1:
            for l in self.fallback(): A.L.append(l)
        A('L_codeend:')
        A('.fill 5120, 4, 0xbf810000')
        A('.section .rodata,"a"'); A('.p2align 6'); A(f'.amdhsa_kernel {KN}')
        for d in ['next_free_vgpr 512', 'next_free_sgpr 102', 'accum_offset 256', 'group_segment_fixed_size 0', 'kernarg_size 72',
                  'user_sgpr_count 2', 'user_sgpr_kernarg_segment_ptr 1', 'system_sgpr_workgroup_id_x 1']:
            A('.amdhsa_' + d)
        A('.end_amdhsa_kernel')
        t = A.text()
        self.nfix = self.nmiss = 0
        if self.p.get('walk', 1):
            t, self.npads = insert_pads(t, 'L_wback', 'L_tailpad', 'L_wback', 4, self.p.get('spacing', 4096))
            t = t.replace('L_wback ; ', '')
        elif self.p.get('align', 1): t, self.nfix, self.nmiss = align_runs(t, 'L_first', self.p.get('minrun', 5))
        return t

if __name__ == '__main__':
    import argparse
    ap = argparse.ArgumentParser()
    ap.add_argument('-o', default='interleave_layers__linear_attn_block__sliding_block__prompt.s')
    ap.add_argument('--nl', type=int, default=4); ap.add_argument('--debug', action='store_true')
    ap.add_argument('--probe', default=None); ap.add_argument('--slow', action='store_true'); ap.add_argument('--fb', action='store_true')
    a = ap.parse_args()
    g = Gen(a.nl, a.debug, a.slow, a.fb, a.probe)
    t = g.build()
    open(a.o, 'w').write(t)
    print('lines', t.count('\n'), 'nops inserted', g.A.nops, 'aligned', g.nfix, 'missed', g.nmiss)
    if a.debug: open(a.o + '.names', 'w').write('\n'.join(g.names))
```

```python
from gen import *
import gen as G1

vOL, vXS, vTOT = 'v4', 'v5', 'v19'
sPHI = 's[58:59]'; sSM = 's[60:61]'; sRSW = 's62'
hTR0, hTR1, hDUM, hCT, hST = 'v2', 'v3', 'v7', 'v8', 'v10'
HXA, HCK, HCV, HCQ, HCB, HRA, HGA, HSEL, HWT = 32, 36, 40, 44, 48, 52, 56, 28, 20
HSP, HKV, HQA, HQB, HWO = 60, 64, 128, 160, 192
hW13, hTAG, hRES, hOW, hRO = 's89', 's84', 's85', 's86', 's87'

class Gen(G1.Gen):
    def __init__(self, nlayers=4, debug=False, force_slow=False, force_fb=False, probe=None, **kw):
        super().__init__(nlayers, debug, force_slow, force_fb, probe, **kw)
        assert nlayers == 4
        self.M = self.A; self.H = Asm(); self.H.uid = 100000; self.H.tail = self.M.tail
        self.bars = {id(self.M): [], id(self.H): []}
        self.kvq = [HKV + 4*i for i in range(16)]

    def bar(self, name, wait=True, rec=True):
        if wait: self.A.wait(lg='all')
        self.A(f's_barrier ; {name}')
        if rec: self.bars[id(self.A)].append(name)
        if self.A is self.H: self.open.add(name)

    def head(self):
        A = self.A
        A('s_cmpk_ge_u32 s2, 0x100'); A('s_cbranch_scc1 L_end')
        if self.probe or self.debug: A('s_memtime s[100:101]' if self.debug == 2 else 's_memrealtime s[100:101]')
        A('s_load_dwordx2 s[24:25], s[0:1], 64')
        A('s_load_dwordx16 s[32:47], s[0:1], 0')
        A('s_getpc_b64 s[96:97]'); A('L_pc:')
        A('s_lshr_b32 s3, s2, 3'); A('s_lshl_b32 s98, s3, 11')
        A('v_readfirstlane_b32 s63, v0')
        A('v_lshl_add_u32 v8, v0, 2, s98')
        A('global_load_dword v7, v8, s[96:97]')
        A('v_and_b32 v0, 63, v0')
        A(f's_bfe_u32 {sW}, s63, 0x20006')
        A(f's_and_b32 {sC}, s2, 7'); A(f's_lshr_b32 {sROT}, s3, 4'); A(f's_lshl1_add_u32 {sC}, {sC}, {sROT}')
        A(f's_and_b32 {sJ}, s3, 15'); A(f's_lshl2_add_u32 {sTB}, {sC}, {sW}')
        A('s_and_b32 s3, s3, 1'); A(f's_lshl1_add_u32 {sROT}, {sROT}, s3')
        A(f'v_lshlrev_b32 {vL16}, 4, {vLANE}'); A(f'v_lshlrev_b32 {vL128}, 7, {vLANE}')
        A(f's_lshl4_add_u32 s81, {sTB}, {sJ}'); A('s_lshl_b32 s83, s81, 11'); A('s_lshl_b32 s80, s81, 9'); A('s_mulk_i32 s81, 1536')
        A(f's_lshl_b32 {sW11}, {sW}, 11'); A(f's_lshl_b32 {sXO}, {sTB}, 15'); A(f's_mov_b32 {sSPIN}, 0')
        A('s_mov_b32 s7, 0x20000')
        for b, n in ((4, 0x200000), (8, 0x180000), (12, 0x180000), (16, 0x80000), (20, 0x80000), (24, WS_BYTES), (28, 0x200000)):
            A(f's_mov_b32 s{b+2}, {hx(n)}')
            if b != 4: A(f's_mov_b32 s{b+3}, s7')
        A('s_waitcnt lgkmcnt(0)')
        A(f's_load_dword {sNON}, s[24:25], {EPOCH}')
        for b, p in ((4, 32), (8, 34), (16, 36), (12, 40), (20, 42), (28, 44), (32, 24)): A(f's_mov_b64 s[{b}:{b+1}], s[{p}:{p+1}]')
        A(f's_mov_b32 s34, {hx(WS_BYTES - PAIR)}'); A('s_mov_b32 s35, s7')
        A('s_cmpk_ge_u32 s63, 0x100'); A('s_cbranch_scc1 L_helper')
        A(f'buffer_load_dwordx4 {vr(AK,4)}, {vL16}, {S_X0}, s83 offen')
        self.trow = A(f'buffer_load_dwordx4 {vr(AK+4,4)}, {vL16}, {S_X0}, s83 offen offset:1024')
        A('s_mov_b64 exec, 0xfff'); A(f'buffer_load_dword v{RES}, {vL128}, {S_WA}, s81 offen')
        A('s_mov_b64 exec, 15'); A(f'buffer_load_dword v{RES}, {vL128}, {S_OA}, s80 offen')
        A('s_mov_b64 exec, -1')
        A('s_branch L_main')

    def chunks(self):
        for g in range(4):
            self.A(f's_add_u32 {sCH[g]}, {sROT}, {g}\ns_and_b32 {sCH[g]}, {sCH[g]}, 3\ns_lshl_b32 {sCH[g]}, {sCH[g]}, 13')
    def tr_addr(self, d, t):
        A = self.A
        A(f'v_lshrrev_b32 v{t}, 5, {vLANE}'); A(f'v_lshlrev_b32 {d}, 9, v{t}')
        for (o, wd, sh) in [(2, 2, 6), (4, 1, 5), (0, 1, 4), (1, 1, 3)]:
            A(f'v_bfe_u32 v{t}, {vLANE}, {o}, {wd}'); A(f'v_lshl_add_u32 {d}, v{t}, {sh}, {d}')
    def flag_offsets(self):
        self.A(f's_add_u32 {sOO}, {sXO}, {OB}\ns_lshl_b32 s91, {sTB}, 11\ns_add_u32 {sST}, s91, {STAT}\n'
               f's_lshl_b32 s91, {sTB}, 7\ns_add_u32 {sXF}, s91, {XF}\ns_add_u32 {sOF}, s91, {OF}')

    def q_write(self, r): return [f'ds_write_b128 {vBK1}, {vr(r+4*i,4)} offset:{WQ-65536+self.bk_off(i)}' for i in range(8)]
    def q_save(self, r): return [f'ds_read_b128 {vr(r+4*i,4)}, {vBK1} offset:{WQ-65536+self.bk_off(i)}' for i in range(8)]
    def kv_write(self): return [f'ds_write_b128 {vBK0}, {vr(self.kvq[n],4)} offset:{self.kv_off(n)}' for n in range(16)]
    def kv_swap(self):
        q = [HSP] + self.kvq
        out = [f'ds_read_b128 {vr(q[n],4)}, {vBK0} offset:{self.kv_off(n)}\nds_write_b128 {vBK0}, {vr(q[n+1],4)} offset:{self.kv_off(n)}' for n in range(16)]
        self.kvq = q[:16]
        return out
    def wo_write(self, half): return [f'ds_write_b128 {vBKO}, {vr(HWO+4*n,4)} offset:{self.wo_off(n)-65536}' for n in range(8*half, 8*half+8)]
    def raw_off(self, n): return (WO if n < 8 else WK) + 16384*((n >> 2) & 1)
    def wo_raw(self, ns):
        return [f's_add_u32 m0, {sW12}, {self.raw_off(n)+1024*(n&3)}\ns_add_u32 s93, {sO16[n>>2]}, {self.wo_src(n)}\n'
                f'buffer_load_dwordx4 v12, {S_OA}, s93 offen lds' for n in ns]
    def wo_dma_rl(self):
        out = []
        for n in range(16):
            pre = f's_add_u32 m0, {sW12}, {self.wo_off(n)}\ns_lshl1_add_u32 s93, {sCH[n>>2]}, {hRO}\n' if n % 4 == 0 else ''
            out.append(pre + f'buffer_load_dwordx4 {vL16}, {S_WS}, s93 offen offset:{1024*(n&3)} sc1 lds')
        return out
    def h_touch(self):
        l = self.A.lab('pc')
        return f's_getpc_b64 s[92:93]\n{l}:\ns_sub_u32 s92, s92, {l}-L_pc\ns_subb_u32 s93, s93, 0\nglobal_load_dword {hDUM}, {hCT}, s[92:93]'

    def h_rl_setup(self):
        A = self.A; t = HGA; ld, st, t0, t1 = HRA, HRA+1, HRA+2, HRA+3
        A(f's_cmp_ge_u32 {sC}, 12\ns_cselect_b64 vcc, -1, 0\ns_cselect_b64 s[12:13], s[20:21], s[12:13]\ns_cselect_b32 s14, s22, s14')
        A(f's_cselect_b32 s92, 1024, 0\ns_cselect_b32 s93, 0, 3072\ns_or_b32 s93, s93, s92')
        A(f'v_lshrrev_b32 v{t}, 2, {vLANE}\nv_and_b32 v{t+1}, 3, {vLANE}\nv_lshlrev_b32 v{t+1}, 4, v{t+1}\nv_mad_u32_u24 v{ld}, v{t}, s93, v{t+1}')
        A(f's_and_b32 s92, {sC}, 3\ns_lshl2_add_u32 s91, s92, {sW}\ns_lshl_b32 s91, s91, 5\ns_mul_i32 s91, s91, s93\ns_lshl_b32 {sRA[1]}, s93, 4')
        A(f's_lshr_b32 s93, {sC}, 2\ns_add_u32 s93, s93, 1\ns_cmp_ge_u32 s93, 3\ns_cselect_b32 s93, 0, s93\ns_lshl4_add_u32 s93, s93, {sJ}\ns_lshl_b32 s93, s93, 6')
        A(f's_add_u32 {sRA[0]}, s91, s93\ns_add_u32 {sRA[1]}, {sRA[1]}, {sRA[0]}')
        A(f's_mul_i32 s91, {sJ}, 12\ns_add_u32 s91, s91, {sC}\ns_lshl_b32 s91, s91, 13\ns_add_u32 s91, s91, {RLB}\nv_add_u32 v{st}, s91, {vBK0}')
        A(f's_lshr_b32 s91, {sJ}, 1\ns_lshl2_add_u32 s91, s91, s92\ns_lshl2_add_u32 s91, s91, {sW}\ns_and_b32 s92, {sJ}, 1\ns_lshl1_add_u32 s91, s91, s92\n'
          f's_lshl_b32 s91, s91, 11\ns_add_u32 s91, s91, {RLO}\nv_add_u32 v{t}, s91, {vL16}\nv_cndmask_b32 v{st}, v{st}, v{t}, vcc')
        A(f'v_lshrrev_b32 v{t}, 4, {vLANE}\nv_bfe_u32 v{t+1}, {vLANE}, 2, 2\nv_lshl_add_u32 v{t}, v{t}, 3, v{t+1}\n'
          f'v_and_b32 v{t+1}, 3, {vLANE}\nv_lshl_add_u32 v{t}, v{t}, 3, v{t+1}\ns_add_u32 s91, {sW11}, 0x10000\nv_lshl_add_u32 v{t}, v{t}, 3, s91\n'
          f'v_cndmask_b32 v{t0}, {hTR1}, v{t}, vcc\ns_cmp_ge_u32 {sC}, 12\ns_cselect_b32 s91, 32, 1024\nv_add_u32 v{t1}, s91, v{t0}')
    def h_rl_items(self):
        A = self.A; d = HQB; SC = WQ - 65536 + 3*8192
        ld = '\n'.join(f'buffer_load_dwordx4 {vr(d+4*i,4)}, v{HRA}, {S_WB}, {sRA[i]} offen' for i in range(2))
        def s():
            A.wait(vm=self.tk['rll'])
            for i in range(2): A(f'ds_write_b128 {vBK1}, {vr(d+4*i,4)} offset:{SC+1024*i}')
            for i in range(2): t = self.tr(d+4*i, f'v{HRA+2+i}', SC)
            A.wait(lg=t)
            for i in range(2): A(f'buffer_store_dwordx4 {vr(d+4*i,4)}, v{HRA+1}, {S_WS}, 0 offen offset:{1024*i} sc1')
            self.csum(HCB, d, True); self.csum(HCB, d+4, False)
        return [ld] + self.mark('rll'), [('c2',), '', s] + self.mark('rls')

    def paced(self, Q, k):
        A = self.A; toks = []
        while Q:
            if len(toks) >= k: A.wait(vm=toks[-k])
            self.pop(Q, 1); toks.append(A.tok())

    def h_preB(self):
        A = self.A; t = HXA
        self.pop(self.ones_slot(t), 9)
        A(f's_mul_i32 s91, {sW}, {REC}\nv_lshrrev_b32 v{t+4}, 3, {vLANE}\nv_lshlrev_b32 v{t+4}, 10, v{t+4}\nv_add3_u32 v{t+4}, v{t+4}, {vMISC}, s91')
        A(f's_mov_b64 exec, 0xffff\nds_write_b128 v{t+4}, {vr(t,4)} offset:3072\ns_mov_b64 exec, -1')
        A(f'v_lshrrev_b32 v{t+5}, 5, {vLANE}\nv_mad_i32_i24 v{t+5}, v{t+5}, -16, {vF4}\ns_lshl_b32 s91, {sW}, 5\nv_subrev_u32 v{t+5}, s91, v{t+5}')
        A(f'v_mov_b32 v{t+6}, 0xff800000\nv_mov_b32 v{t+7}, 0\ns_lshl_b32 s91, {sW}, 10\ns_add_u32 s91, s91, {WO}\nv_add_u32 v{t+16}, s91, {vL16}')
        for jj in range(4):
            A(f'v_cmp_le_i32 vcc, {4*jj}, v{t+5}\nv_cndmask_b32 v{t+8+jj}, v{t+6}, v{t+7}, vcc\nv_cndmask_b32 v{t+12+jj}, 0, v{t+6}, vcc')
        A(f'ds_write_b128 v{t+16}, {vr(t+8,4)}\nds_write_b128 v{t+16}, {vr(t+12,4)} offset:4096')

    def helper(self):
        A = self.A = self.H; P = self.p; B = self.B
        A('L_helper:')
        A(f'v_lshrrev_b32 v12, 2, {vLANE}\nv_and_b32 v13, 3, {vLANE}\nv_mul_u32_u24 v18, 3072, v12\nv_lshl_add_u32 v18, v13, 4, v18')
        A(f's_mul_i32 s91, {sW}, {32*3072}\ns_lshl_b32 s92, {sJ}, 6\ns_add_u32 s91, s91, s92\nv_add_u32 v18, s91, v18')
        self.chunks()
        for g in range(4): A(f's_mul_i32 {sWO48[g]}, {sCH[g]}, 48\ns_lshr_b32 {sXC[g]}, {sCH[g]}, 5')
        XA = HXA; SLOT = [WO, WQ, MISC, WO]
        def xdma(g): return [f's_add_u32 m0, {hW13}, {SLOT[g]+1024*i}\ns_add_u32 s93, {sXC[g]}, {4096*i}\n'
                             f'buffer_load_dwordx4 v{XA+(i&3)}, {S_X0}, s93 offen lds' for i in range(8)]
        kvd = lambda g: self.w_dma(S_WA, g, 1024, WK) + self.w_dma(S_WA, g, 2048, WV)
        PT = (f's_sub_u32 s92, {hOW}, {OB}\ns_mov_b64 exec, 0xffff\n'
              f'buffer_load_dword {hDUM}, {vL128}, {S_WS}, {hOW} offen\nbuffer_load_dword {hDUM}, {vL128}, {S_OUT}, s92 offen\n'
              f's_lshl_b32 s91, {sJ}, 7\ns_add_u32 s91, s91, {sST}\ns_mov_b64 exec, 1\nbuffer_load_dword {hDUM}, {vL128}, {S_WS}, s91 offen\n'
              f'buffer_load_dword {hDUM}, {vL128}, {S_WS}, {sXF} offen\nbuffer_load_dword {hDUM}, {vL128}, {S_WS}, {sOF} offen\ns_mov_b64 exec, -1')
        items = {'PT': [PT], 'CT': [self.h_touch()], 'IS': [self.init_stores(HWO)],
                 'R': [('c3',), f's_add_u32 m0, {sW11}, {QL}\ns_add_u32 s92, {hRES}, {8192-1024}\n'
                       f'buffer_load_dwordx4 {hST}, {S_X0}, {hRES} offen lds\nbuffer_load_dwordx4 {hST}, {S_X0}, s92 offen offset:1024 lds']}
        for g in range(4):
            x = xdma(g); items[f'x{g}a'] = ([('c1',)] if g == 3 else []) + x[:4]; items[f'x{g}b'] = x[4:]
            items[f'W{g}'] = kvd(g)
            items[f'Q{g}'] = [('c2',)] + self.w_dma(S_WA, g, 0, WQ)
            items[f'O{g}'] = [('mu',) if g < 2 else ('B1',)] + self.wo_raw(range(4*g, 4*g+4))
        items['RLl'], items['RLs'] = self.h_rl_items()
        order = P.get('order', 'W0- |xa x0a W0 |setup x0b x1a x1b W1 W2 RLl x2a x2b W3 x3a x3b Q0 RLs IS Q1 Q2 Q3 O0 |pt PT O1 O2 O3 R CT').split()
        assert order.index('RLs') < order.index('Q3')
        need = {'x0': 'W0 x0a x0b', 'x1': 'W1 x1a x1b', 'x2': 'W2 x2a x2b', 'x3': 'W3 x3a x3b', 'wq': 'Q0 Q1 Q2 Q3 RLs IS', 'wo': 'O0 O1 O2 O3', 'res': 'R'}
        seen = set()
        for o in order:
            if o[0] == '|': B.append((o[1:],)); continue
            if o[-1] == '-':
                it = items[o[:-1]]; k = next(i for i, x in enumerate(it) if isinstance(x, str))
                B += it[:k+1]; items[o[:-1]] = it[k+1:]; continue
            B += items[o]; seen.add(o)
            for k, v in list(need.items()):
                if set(v.split()) <= seen: B += self.mark(k); del need[k]
        assert not need
        self.bpop(99)
        A(f'v_lshrrev_b32 v12, 4, {vLANE}\nv_and_b32 v13, 15, {vLANE}\nv_xor_b32 v13, v13, v12\nv_lshlrev_b32 v13, 4, v13')
        A(f'v_lshl_add_u32 v{XA}, v12, 10, v13\nv_add_u32 v{XA}, {sXO}, v{XA}')
        for i in range(1, 4): A(f'v_xor_b32 v{XA+i}, {64*i}, v{XA}')
        A(f's_lshl_b32 {hW13}, {sW}, 13')
        self.open.add('xa'); self.bpop(99)
        self.tr_addr(hTR0, 13)
        A(f'v_add_u32 {hTR0}, {sW11}, {hTR0}\nv_add_u32 {hTR1}, 0x10000, {hTR0}')
        A(f'v_add_u32 {vBK0}, {sW11}, {vL16}\nv_add_u32 {vBK1}, 0x10000, {vBK0}\nv_add_u32 {vBKO}, {sW11}, {vBK1}\nv_add_u32 {vMISC}, {MISC}, {vL16}')
        A(f'v_and_b32 {vF4}, 31, {vLANE}\nv_lshlrev_b32 {vF4}, 2, {vF4}')
        A(f's_and_b32 s91, {sC}, 1\ns_lshl4_add_u32 s91, s91, {sJ}\ns_lshl2_add_u32 s91, s91, {sW}\ns_lshl_b32 s91, s91, 9\nv_lshl_add_u32 {hCT}, {vLANE}, 3, s91')
        self.pop(self.selector() + self.cs_addr(17), 99)
        self.h_rl_setup()
        LATE = [lambda: A(self.wo_voff(12, 13)), self.flag_offsets, lambda: self.early_setup(0),
                self.row_tile() + f'\ns_mov_b32 {hRES}, s91', self.row_voff(10, 13),
                f's_lshl_b32 {sW12}, {sW}, 12\ns_mul_i32 s91, {sJ}, {3*32768}\ns_add_u32 s91, s91, {RLB}\n' +
                '\n'.join(f's_add_u32 {sRL[g]}, {sCH[g]}, s91\ns_lshl_b32 {sO16[g]}, {sCH[g]}, 4' for g in range(4)),
                f's_lshl_b32 {hOW}, {sJ}, 11\ns_add_u32 {hOW}, {hOW}, {sOO}\n'
                f's_lshr_b32 s91, {sJ}, 1\ns_lshl_b32 s91, s91, 16\ns_add_u32 s91, s91, {sW12}\ns_add_u32 {hRO}, s91, {RLO}',
                f'v_add_u32 v16, {sW12}, {vMISC}',
                f'v_bfe_u32 v{HWT+1}, {vLANE}, 2, 3\nv_lshl_add_u32 v{HWT}, v{HWT+1}, 7, {sW12}\nv_lshrrev_b32 v{HWT+1}, 1, v{HWT+1}\n'
                f'v_lshl_add_u32 v{HWT}, v{HWT+1}, 5, v{HWT}\nv_and_b32 v{HWT+1}, 3, {vLANE}\nv_lshl_add_u32 v{HWT}, v{HWT+1}, 3, v{HWT}\n'
                f'v_lshrrev_b32 v{HWT+1}, 5, {vLANE}\nv_lshl_add_u32 v{HWT}, v{HWT+1}, 11, v{HWT}\n' +
                '\n'.join(f'v_xor_b32 v{HWT+f}, {32*f}, v{HWT}' for f in range(1, 4))]
        self.pop(LATE, P.get('hl0', 99))
        A('s_waitcnt lgkmcnt(0)')
        A(f's_add_u32 {sNON}, {sNON}, 0x9e3779b9')
        self.open.add('setup')
        cq = lambda g, i: HKV + 32*(i & 1) + 8*g + 4*(i >> 1)
        for g in range(4):
            self.bpop(0, f'x{g}')
            while len(A.vmops) - self.tk[f'x{g}'][0] < P.get('ahead', [10]*4)[g]:
                n_ = len(B); self.bpop(1)
                if len(B) == n_: break
            A.wait(vm=self.tk[f'x{g}'])
            self.bar(f'c{g}', wait=False)
            for i in range(4): t = self.tr(cq(g, i), hTR0, (WK, WV)[i & 1] + 8192*g + 1024*(i >> 1))
            if g < 3: self.bpop(2)
            A.wait(lg=t)
            A('s_setprio 3')
            for i in range(4): self.csum((HCK, HCV)[i & 1], cq(g, i), g == 0 and i < 2)
            if g < 3: A('s_setprio 0')
            if g == 0: self.pop(LATE, 99)
        self.pop(self.cs_write(HCK, HCK+2, 'v17', 0) + self.cs_write(HCV, HCV+2, 'v17', 1024), 99)
        A('s_setprio 0')
        self.bpop(P.get('m0', 2))
        self.bar('mu')
        self.bpop(99, 'wq')
        for b in range(3): A(f's_lshr_b32 s91, {sC}, 2\ns_cmp_eq_u32 s91, {b}\ns_cselect_b32 s91, -1, 0\nv_and_b32 v{HGA+b}, s91, v{HCB}')
        A(f'ds_write_b96 v16, {vr(HGA,3)} offset:3072')
        A.wait(vm=self.tk['wq'])
        self.bar('B1')
        tc = [self.tr(HQA + 4*n, hTR1, WQ - 65536 + self.bk_off(n)) for n in range(8)]
        def csq():
            A('s_setprio 3')
            for n in range(8): A.wait(lg=tc[n]); self.csum(HCQ, HQA + 4*n, n == 0)
            self.pop(self.cs_write(HCQ, HCQ+2, 'v17', 2048), 99)
            A('s_setprio 0')
        if P.get('cse'): csq()
        self.bar('pt', wait=False)
        self.bpop(P.get('p0', 5))
        if not P.get('cse'): csq()
        self.bpop(P.get('p1', 99))
        self.bar('cq')
        self.bpop(99, 'res')
        assert not B
        A.wait(vm=self.tk['wo'])
        for n in range(8, 16): self.tr(HWO + 4*n, f'v{HWT+(n&3)}', self.raw_off(n), 1024)
        for f in range(4): A(f'v_add_u32 v{HWT+f}, 0x10000, v{HWT+f}')
        for n in range(8): t = self.tr(HWO + 4*n, f'v{HWT+(n&3)}', self.raw_off(n) - 65536, 1024)
        A.wait(lg=t)
        if not P.get('cvl'): self.pop(self.wo_write(0), 99)
        A.wait(vm=self.tk['res'])
        self.bar('B2')
        KB = []
        for g in range(4): KB += self.rl_dma(g, 0, WK) + self.rl_dma(g, 1, WV)
        self.pop(KB, P.get('g0', 2))
        if P.get('cvl'): self.pop(self.wo_write(0), 99); self.bar('BR0')
        self.pop(self.wo_write(1), 99)
        self.bar('BR')
        self.bar('BO'); self.pop(KB, P.get('g4', 4))
        self.bar('BX'); self.pop(KB, 99)
        A.wait(vm='all'); self.bar('B3')
        self.h_preB()
        self.bar('BQ0')
        for g in range(4): self.pop(self.rl_dma(g, 2, WQ), 9)
        A.wait(vm='all'); self.bar('BQ1')
        self.pop(self.q_save(HQB), 99)
        self.bar('B1a'); self.bar('B1')
        self.pop(self.kv_swap(), 99)
        self.bar('HG', wait=False)
        WB_ = self.wo_dma_rl()
        self.paced(WB_[:4] + [self.h_touch()] + WB_[4:], P.get('pk', 4))
        A.wait(vm='all'); self.bar('BR')
        self.bar('B3')
        self.pop(self.q_write(HQA) + self.wo_write(0), 99)
        self.bar('BQ')
        self.bar('B1')
        W = self.kv_write()
        self.pop(W, P.get('kw0', 16))
        self.bar('B2')
        self.pop(self.wo_write(1), 99)
        self.bar('BR'); self.pop(W, 99)
        self.bar('B3')
        self.pop(self.q_write(HQB), 99)
        self.h_preB()
        self.bar('BQ'); self.bar('B1a')
        A.cond_begin(); A(self.epoch()); A.cond_end()
        self.bar('B1')
        self.bar('HG')
        self.paced(self.wo_dma_rl(), P.get('pk', 4))
        A.wait(vm='all'); self.bar('BR')
        A('s_endpgm')
        self.A = self.M

    def stats_finish(self, t, isA):
        Q = super().stats_finish(t, isA)
        k = next(i for i, x in enumerate(Q) if x.startswith('s_lshl_b32 s91'))
        w = [f'v_add_u32 v{t}, {sRSW}, {vF4}', f'ds_write_b32 v{t}, {vRSTD}']
        return Q[:k] + Q[k+2:-4] + w + Q[-4:]
    def phi_ops(self, acc, e, dst, n): return [o.replace('s[86:87]', sPHI).replace('s87', 's59') for o in super().phi_ops(acc, e, dst, n)]
    def walk(self):
        A = self.A
        A('s_mov_b64 exec, 0')
        for w in range(3): A(f's_cmp_eq_u32 {sW}, {w}'); A(f's_cbranch_scc1 L_wback ; L_PADHEAD{w}')
        A('s_branch L_wback ; L_PADHEAD3')
        A('.p2align 12')
        A('L_wback:')
        A('s_mov_b64 exec, -1')

    def prologue(self):
        A = self.A; P = self.p; XRD = AQ
        A('L_main:')
        if P.get('prio', 1): A('s_setprio 1')
        if self.probe: A('s_mov_b32 s99, s100')
        A(f'v_lshrrev_b32 v12, 5, {vLANE}\nv_and_b32 v13, 31, {vLANE}\nv_lshlrev_b32 {vF4}, 2, v13\nv_mov_b32 v16, {hx(ONES)}')
        A('s_getreg_b32 s86, hwreg(HW_REG_XCC_ID, 0, 4)')
        A(f's_lshl_b32 s87, {sTB}, 11\ns_add_u32 s87, s87, {ST0}\ns_lshl_b32 s84, {sJ}, 7\ns_add_u32 s84, s84, s87')
        A(f'v_lshrrev_b32 v15, 2, {vLANE}\nv_and_or_b32 v15, {vLANE}, 3, v15\nv_lshlrev_b32 v15, 3, v15')
        for i in range(4): A(f'v_mov_b32 v{AV+i}, 0')
        self.chunks(); self.tr_addr(vTR0, 14)
        A(f'v_add_u32 {vTR1}, 0x10000, {vTR0}\nv_add_u32 {vMISC}, {MISC}, {vL16}')
        A(f's_lshl_b32 {sRSW}, {sW}, 7\ns_add_u32 {sRSW}, {sRSW}, {RSB}\nv_lshl_add_u32 {vRSR}, v12, 4, {sRSW}')
        A(f'v_and_b32 v14, 15, {vLANE}\nv_xor_b32 v14, v14, v12\nv_lshlrev_b32 v14, 4, v14\nv_lshl_add_u32 v14, v13, 8, v14')
        A(f's_lshl_b32 s91, {sW}, 13\ns_add_u32 s91, s91, {WQ}\nv_add_u32 v{XRD}, s91, v14')
        for s in range(1, 8): A(f'v_xor_b32 v{XRD+s}, {32*s}, v{XRD}')
        A('s_mov_b32 s96, 0xffff0000\ns_mov_b32 s97, 0xffff0000')
        self.flag_offsets(); self.early_setup(0)
        A(f's_lshl_b32 {sOWA}, {sJ}, 11\ns_add_u32 {sOWA}, {sOWA}, {sOO}\ns_lshl3_add_u32 {sOFA}, {sJ}, {sOF}')
        A(f's_lshl2_add_u32 s91, {sJ}, {sW}\ns_lshl_b32 s91, s91, 13\ns_add_u32 s91, s91, {PART}\n'
          f's_lshl_b32 {sPST}, {sC}, 9\ns_and_b32 s92, {sPST}, 0x1c00\ns_add_u32 {sPST}, {sPST}, s91')
        for p in range(8): A(f's_addk_i32 s92, 1024\ns_and_b32 s92, s92, 0x1c00\ns_add_u32 {sGOF[p]}, s92, s91')
        A.wait(vm=self.trow)
        if self.debug:
            self.names.append('first'); A(f'v_mov_b32 {vDBG}, 0'); A(f'v_writelane_b32 {vDBG}, s100, 0')
        for i in range(4):
            for r in range(2):
                A(f'v_dot2c_f32_bf16 v{AV+2*r}, v{AK+4*r+i}, v16'); A(f'v_dot2c_f32_bf16 v{AV+2*r+1}, v{AK+4*r+i}, v{AK+4*r+i}')
        A(f'v_permlane32_swap_b32 v{AV}, v{AV+1}'); A(f'v_permlane32_swap_b32 v{AV+2}, v{AV+3}')
        A(f'v_add_f32 v{AV}, v{AV}, v{AV+1}'); A(f'v_add_f32 v{AV+2}, v{AV+2}, v{AV+3}')
        A(f'v_permlane16_swap_b32 v{AV}, v{AV+2}'); A(f'v_add_f32 v{AV}, v{AV}, v{AV+2}')
        for r in (8, 4, 2, 1): A(f'v_add_f32_dpp v{AV}, v{AV}, v{AV} row_ror:{r} row_mask:0xf bank_mask:0xf')
        A('s_waitcnt lgkmcnt(0)')
        A(f's_add_u32 {sNON}, {sNON}, 0x9e3779b9')
        A(f's_add_u32 s85, {sNON}, 32'); A('s_add_u32 s91, s85, s86'); A(f'v_mov_b32 v{AV+1}, s91')
        A('s_mov_b32 exec_lo, 0xf000f'); A('s_mov_b32 exec_hi, 0xf000f')
        A(f'buffer_store_dwordx2 {vr(AV,2)}, v15, {S_WS}, s84 offen sc1')
        A('s_mov_b64 exec, -1')
        A('v_lshrrev_b32 v14, 1, v13\nv_lshl_add_u32 v14, v14, 1, v12\nv_and_b32 v13, 1, v13\nv_lshl_add_u32 v14, v14, 1, v13\nv_lshlrev_b32 v16, 5, v14')
        sb = self.setupB(); del sb[2]; self.pop(sb, 9)
        A(f's_mov_b32 s58, {hx(f2u(LN2))}\ns_mov_b32 s59, {hx(f2u(1e-6))}')
        A(f's_not_b64 {sSM}, {sHALF}\ns_bitcmp1_b32 {sW}, 0\ns_cselect_b64 {sSM}, {sHALF}, {sSM}')
        A(f'v_and_b32 v13, 48, {vLANE}\nv_lshl_add_u32 {vOL}, v13, 4, {vL16}\nv_and_b32 v13, 16, {vLANE}\nv_mad_u32_u24 {vXS}, v13, 48, {vL16}')
        A(f'v_lshlrev_b32 v13, 5, v12\nv_add_u32 v13, {ZOF}, v13\nv_lshlrev_b32 {vTOT}, 5, {vLANE}\nv_add_u32 {vTOT}, {TOT}, {vTOT}\n'
          f'v_cndmask_b32_e64 {vTOT}, {vTOT}, v13, {sHALF}')
        A(f's_lshr_b32 s92, {sW}, 1\ns_lshl_b32 s91, s92, 10\nv_add_u32 v17, s91, {vL16}\ns_lshl_b32 s91, s92, 8\nv_add_u32 v18, s91, {vL16}')
        A(f'v_and_b32 v13, 11, {vLANE}\nv_min_u32 v13, 1, v13\nv_or_b32 v13, 64, v13\nv_lshlrev_b32 v13, 4, v13\nv_cndmask_b32_e64 v18, v18, v13, {sHALF}')
        self.pop(self.preA(0), 99)
        self.walk()
        self.stamp('start')
        tw = {}; tx = {}
        def chunk(g):
            if g == 2:
                for s in range(8): A(f'v_add_u32 v{XRD+s}, 0x8000, v{XRD+s}')
            self.bar(f'c{g}', wait=False); self.stamp(f'chunk{g}')
            so = {0: WO-WQ, 1: 0, 2: MISC-WQ-0x8000, 3: WO-WQ-0x8000}[g]
            return [f'ds_read_b128 {vr(XR+4*(8*g+s),4)}, v{XRD+s} offset:{so}' for s in range(8)]
        st0 = f'buffer_load_dwordx2 v[14:15], v16, {S_WS}, s87 offen sc1'
        def stchk():
            A.wait(vm='all')
            self.retry(['v_subrev_u32 v15, s85, v15', 'v_cmp_lt_u32 vcc, 15, v15'], [st0])
            A('v_cmp_ne_u32 vcc, s86, v15')
            A('s_cmp_lg_u64 vcc, 0')
            A(f's_cselect_b32 {sSLOW}, {hx(SLOW)}, 0')
            if self.force_slow: A(f's_mov_b32 {sSLOW}, {hx(SLOW)}')
        X = chunk(0)
        self.pop(X, 2); self.p1_rd(0, 0, tw); self.pop(X, 2); self.p1_rd(1, 0, tw)
        sf = self.stats_finish(14, True); dq = []; cr = 0
        n0 = P.get('n00', 26)
        for n in range(n0):
            g1 = n // 8 + 1
            A.wait(lg=tw[1, n])
            self.p1_mm(0, n, 0)
            if n % 8 == 6 and g1 < 4:
                assert not X
                X = chunk(g1)
                if g1 == 2: dq = [stchk] + sf[:-6] + self.x_switch()
                if g1 == 3: dq += sf[-6:-4]
            self.pop(X, 2)
            self.p1_rd(n+2, 0, tw)
            self.p1_mm(1, n, 0)
            if n == P.get('st0n', 3): A(st0)
            cr = self.popb(dq, cr + 4)
        assert not X
        self.pop(dq + sf[-4:], 99)
        self.p1_tail(0, n0, tw, {}, lambda: self.bar('mu', wait=False))

    def preA(self, L):
        Q = [f's_mul_i32 s91, {sW}, {3072 if L else 4096}\nv_add_u32 v12, s91, {vMISC}',
             f's_lshl_b32 s91, {sW}, 10\nv_add_u32 v13, s91, {vMISC}\ns_add_u32 s88, {sNON}, {16+L}'] + self.selector()
        if L: Q.append(f's_add_u32 s32, s32, {PAIR}\ns_addc_u32 s33, s33, 0')
        return Q
    def preB(self, L):
        return [f's_mul_i32 s91, {sW}, {REC}\nv_add_u32 v12, s91, {vMISC}', f'v_mov_b32 v{QF+4}, {sNON}',
                f's_lshl1_add_u32 s8, {sSLOW}, s8\ns_lshl1_add_u32 s9, {sSLOW}, s9']

    def pass1(self, L, tw):
        A = self.A; isA = (L % 2 == 0); P = self.p
        tx = {}; st = {}
        D = P['depth']
        def ldx(s):
            if s % 8 == 0: A(f's_add_u32 s90, {sXO}, {sCH[s//8]}')
            if s % 8 == 4: A('s_add_u32 s90, s90, 4096')
            tx[s] = A(f'buffer_load_dwordx4 {vr(XR+4*s,4)}, {vL16}, {S_XB}, s90 offen offset:{(s%4)*1024} sc1')
        sl = [f'buffer_load_dwordx4 {vr(AQ+4*i,4)}, {vL16}, {S_WS}, {sST} offen offset:{1024*i} sc1' for i in range(2)]
        F = [lambda i=i: st.__setitem__(i, A(sl[i])) for i in range(2)]
        for s in range(D): ldx(s)
        self.pop(self.preA(L) if isA else self.preB(L), 99)
        nx = D
        par = L & 1; op = '0x80' if par else '0xfe'
        chk = [f'v_bitop3_b32 v14, v{AQ}, v{AQ+1}, v{AQ+2} bitop3:{op}'] + \
              [f'v_bitop3_b32 v14, v14, v{AQ+2*i+1}, v{AQ+min(2*i+2,7)} bitop3:{op}' for i in range(1, 4)] + \
              ['v_and_b32 v14, 1, v14', f'v_cmp_ne_u32 vcc, {par}, v14']
        lo, lb = A.lab('ro'), A.lab('rb')
        A.tail += [f'{lo}:'] + sl + [f's_add_u32 {sSPIN}, {sSPIN}, 1', f's_cmp_lt_u32 {sSPIN}, {SPIN_LIMIT}', 's_cselect_b64 s[94:95], -1, 0',
                   's_waitcnt vmcnt(0)'] + chk + ['s_and_b64 vcc, vcc, s[94:95]', f's_cbranch_scc1 {lo}', f's_branch {lb}']
        G = [lambda: A.wait(vm=st[1])] + chk[:-1] + [chk[-1] + f'\ns_cbranch_vccnz {lo}\n{lb}:']
        for i in range(2): G.append(f'v_pk_add_f32 {vr(AQ+2*i,2)}, {vr(AQ+2*i,2)}, {vr(AQ+4+2*i,2)}')
        G.append(f'v_pk_add_f32 {vr(AQ,2)}, {vr(AQ,2)}, {vr(AQ+2,2)}')
        G.append(f'v_add_f32 v14, v{AQ}, v{AQ+1}')
        G += self.stats_finish(14, isA)
        cr = 0; n0 = P.get('n0', 27)
        for n in range(n0):
            A.wait(vm=tx[n], lg=tw[1, n])
            if n in (0, 8, 16, 24): self.stamp(f'L{L}.p1s{n}')
            self.p1_mm(0, n, L)
            if L > 1 and n == P.get('bq', 24): self.bar('BQ', wait=False)
            self.p1_rd(n+2, L, tw)
            self.p1_mm(1, n, L)
            if F: self.pop(F, 1)
            elif nx < 32:
                ldx(nx); nx += 1
                if nx < 32 and n in (P.get('l1x', (6, 9, 12, 15, 18)) if L == 1 else P.get('xx', (12, 16, 20))): ldx(nx); nx += 1
                if nx == 32 and L == 1: self.bar('BQ0', wait=False)
            if n >= P.get('g0n', 8): cr = self.popb(G, cr + P.get('gb', 2.5))
        assert nx == 32
        self.pop(G, 99)
        self.p1_tail(L, n0, tw, tx)

    def layerA(self, L):
        A = self.A; P = self.p
        self.stamp(f'L{L} pass1')
        pre = self.pass2_pre(L) if L else {}
        self.pop(self.KE, 99)
        for i in range(8): A(f'v_pk_mul_f32 {vr(AV+2*i,2)}, {vr(AV+2*i,2)}, {vr(AQ+2*i,2)}')
        self.csum(QF+4, WF+4, False)
        G = AV
        for i in range(8):
            A(f'v_cvt_pk_bf16_f32 v{WF+8+i}, v{AV+2*i}, v{AV+2*i+1}')
            if i == 5: self.mfma(AK, WF, WF+8, None)
        A(f'v_mov_b32 v{G+10}, v{QF+4}')
        self.stamp(f'L{L}.phik')
        self.mfma(AK, WF+4, WF+12, AK)
        s0 = 0; gaps = P.get('gaps', (2, 1, 2, 3, 1)) if L else (0,)*5; PS = AK
        def qs(k):
            nonlocal s0
            for _ in range(gaps[k]): self.p2_step(L, s0, pre); s0 += 1
        qs(0)
        for i in range(8):
            A(f'v_cndmask_b32_e64 v{G+4*(i//3)+i%3}, v{AK+i}, v{AK+8+i}, {sHALF}')
            if i in (2, 5): A(f'ds_write_b96 v12, {vr(G+4*(i//3),3)} offset:{1024*(i//3)}')
            if i == 2: qs(1)
        t = A(f'ds_write_b96 v12, {vr(G+8,3)} offset:2048')
        A(f'v_mov_b32 v{PS+3}, s88')
        A(f's_cmp_eq_u32 {sW}, {3 if L else 4}\ns_cselect_b64 vcc, 0, -1')
        qs(2)
        self.stamp(f'L{L}.preB1')
        A.wait(lg=t); self.bar('B1', wait=False)
        t = [A(f'ds_read_b96 {vr(PS+4*p,3)}, v13 offset:{(3072 if L else 4096)*p}') for p in range(4)]
        qs(3)
        if L == 0: pre = self.pass2_pre(L); A(f's_cmp_eq_u32 {sW}, 3')
        for p in range(1, 4):
            A.wait(lg=t[p])
            A(f'v_pk_add_f32 {vr(PS,2)}, {vr(PS,2)}, {vr(PS+4*p,2)}'); A(f'v_add_f32 v{PS+2}, v{PS+2}, v{PS+4*p+2}')
        if L == 0:
            lb = A.lab('csb')
            A(f's_cbranch_scc0 {lb}'); A('s_mov_b32 exec_lo, 0')
            for i in range(3): A(f'v_cvt_pk_bf16_f32 v{PS+4+i}, v{PS+i}, v{PS+i}')
            for i in range(3): A(f'v_lshlrev_b32 v{PS+4+i}, 16, v{PS+4+i}')
            for i in range(3): A(f'v_sub_f32 v{PS+i}, v{PS+i}, v{PS+4+i}')
            A('s_mov_b32 exec_lo, -1'); A(f'{lb}:')
        A(f'v_cvt_pk_bf16_f32 v{PS}, v{PS}, v{PS+1}')
        qs(4)
        A(f'v_permlane32_swap_b32 v{PS+2}, v{PS+4}'); A(f'v_permlane32_swap_b32 v{PS}, v{PS+1}')
        A(f'v_cvt_pk_bf16_f32 v{PS+2}, v{PS+2}, v{PS+4}')
        A.nreg += 1; reg = A.nreg
        def only012(txt):
            if L == 0: return A(txt)
            l = A.lab('g3'); A(f's_cbranch_vccz {l}')
            A.stack.append(reg); t = A(txt); A.stack.pop(); A(f'{l}:')
            return t
        only012(f's_mov_b32 exec_hi, 0\nbuffer_store_dwordx4 {vr(PS,4)}, {vL16}, {S_PL}, {sPST} offen sc1\ns_mov_b32 exec_hi, -1')
        if L == 0: self.bar('pt', wait=False)
        self.stamp(f'L{L} part')
        SEL, GA = AV+4, XR+40
        S = [f's_mul_i32 s89, {sSLOW}, {L+1}\ns_add_u32 s89, s89, {sOWA}\ns_add_u32 {sEXP}, {sNON}, {8+L}',
             f'v_mov_b32 v12, {sEXP}\nv_mov_b32 v13, {sEXP}\ns_add_u32 {sOR}, {sOR}, {sSLOW}',
             f's_mul_i32 s91, {sW}, 12\ns_add_u32 s91, s91, {TOT}\nv_lshl_add_u32 v14, {vLANE}, 5, s91', f'v_and_b32 v15, 3, {vLANE}']
        S += [f'v_bfe_u32 v16, {vLANE}, {o}, 1\nv_lshl_add_u32 v15, v16, {sh}, v15' for o, sh in ((2, 3), (3, 2), (4, 7))]
        S += [f'v_lshlrev_b32 v15, 2, v15\nv_add_u32 v15, {ZOF}, v15\nv_add_u32 v16, 8, v14',
              f's_cmp_eq_u32 {sW}, 2\ns_cselect_b64 s[92:93], -1, 0\nv_cndmask_b32_e64 v15, v16, v15, s[92:93]', f'v_mov_b32 v16, {hx(f2u(LOG2E))}']
        def lm(f): return hx(sum(1 << l for l in range(32) if f(l & 15, l >> 4)))
        act = lambda m, g: g == ((m >> 2) & 1)
        S.append(f's_mov_b32 s92, {lm(lambda m, g: (m & 3) == 1 or ((m & 3) == 2 and m >> 3))}\ns_mov_b32 s93, s92\n'
                 f'v_mov_b32 v{SEL+3}, 0x3f80\nv_cndmask_b32_e64 v{SEL+3}, v{SEL+3}, 1.0, s[92:93]')
        for k in range(3):
            f = (lambda m, g, k=k: act(m, g) and (m & 3) < 2 and (m >> 3) == k) if k < 2 else (lambda m, g: act(m, g) and (m & 3) == 2)
            S.append(f's_mov_b32 s92, {lm(f)}\ns_mov_b32 s93, s92\nv_cndmask_b32_e64 v{SEL+k}, 0, v{SEL+3}, s[92:93]')
        S.append(f'v_mov_b32 v{SEL+3}, 0')
        if L == 0:
            rl = self.row_lds(RES, QL).split('\n')
            S += ['\n'.join(rl[a:b]) for a, b in ((0, 3), (3, 5), (5, 7), (7, 10))]
        gt = lambda p: f'buffer_load_dwordx4 {vr(XR+4*p,4)}, {vL16}, {S_PL}, {sGOF[p]} offen sc1'
        tg = {}
        GL = [lambda p=p: tg.__setitem__(p, only012(gt(p))) for p in range(8)]
        at = {}
        if L == 0: at[P.get('cqs', 24)] = [lambda: self.bar('cq', wait=False)]
        for s in P.get('gs', [28, 30, 32]) if L else P.get('gs0', [26, 28, 30, 32]): at.setdefault(s, []).append(GL.pop(0))
        self.pass2(L, S, pre, at=at, s0=s0)
        self.stamp(f'L{L} pass2')
        self.pop(GL, 1)
        if L == 0: A(f'v_mov_b32 {vTR0}, {vL16}'); A(f'v_add_u32 {vTR1}, 0x10000, {vL16}')
        for i in range(8): A(f'v_pk_mul_f32 {vr(AQ+2*i,2)}, {vr(AQ+2*i,2)}, v[8:9] op_sel_hi:[1,0]')
        for k, o in enumerate(self.phi_ops(AQ, WF+16, QF, 16)):
            A(o)
            if k % 6 == 5: self.pop(GL, 1)
        assert not GL
        self.op_begin(L)
        if L: self.op_rd(P.get('onA', 14))
        self.stamp(f'L{L}.phiq')
        gx = lambda p: f'v_xor_b32 v{XR+4*p+3}, s88, v{XR+4*p+3}'
        gm = lambda p: f'v_mfma_f32_16x16x32_bf16 {vr(GA,4)}, {vr(SEL,4)}, {vr(XR+4*p,4)}, {vr(GA,4) if p else 0}'
        tv = XR + 32; l3, lj, lok = A.lab('g3'), A.lab('gj'), A.lab('gok')
        if L: A(f's_cbranch_vccz {l3}')
        A.cond_begin(); A.stack.append(reg)
        A.wait(vm=tg[1]); A(gx(0)); A(gx(1))
        for p in range(8):
            if p + 2 < 8: A.wait(vm=tg[p+2]); A(gx(p+2))
            A(gm(p))
        A(f'{lj}:')
        A(f'v_or3_b32 v{tv}, v{XR+3}, v{XR+7}, v{XR+11}\nv_or3_b32 v{tv}, v{tv}, v{XR+15}, v{XR+19}\n'
          f'v_or3_b32 v{tv}, v{tv}, v{XR+23}, v{XR+27}\nv_or_b32 v{tv}, v{tv}, v{XR+31}\nv_cmp_ne_u32 vcc, 0, v{tv}')
        A(f's_cbranch_vccz {lok}')
        tl = [f's_add_u32 {sSPIN}, {sSPIN}, 1', f's_cmp_lt_u32 {sSPIN}, {SPIN_LIMIT}', f's_cbranch_scc0 {lok}']
        for p in range(8):
            l = A.lab('gs')
            tl += [f'v_cmp_ne_u32 vcc, 0, v{XR+4*p+3}', gx(p), f's_cbranch_vccz {l}', gt(p), f'{l}:']
        A.L += tl + ['s_waitcnt vmcnt(0)'] + [gx(p) for p in range(8)] + [gm(p) for p in range(8)] + [f's_branch {lj}']
        A(f'{lok}:')
        if L == 0: A(f's_cmp_eq_u32 {sW}, 3'); A(f's_cbranch_scc1 {l3}')
        A(f'ds_write2_b32 v14, v{GA}, v{GA+1} offset0:0 offset1:1')
        A(f'ds_write_b32 v15, v{GA+2}')
        A.stack.pop(); A.cond_end()
        A(f'{l3}:')
        self.stamp(f'L{L}.preB2')
        self.bar('B2')
        self.stamp(f'L{L} gather')
        t = {}
        for H in range(2):
            A(f'ds_read_b128 {vr(WF+8*H,4)}, {vTOT} offset:{512*H}'); t[H] = A(f'ds_read_b128 {vr(WF+8*H+4,4)}, {vTOT} offset:{512*H+16}')
        if L == 0:
            A(f'ds_read_b128 {vr(RES+4,4)}, v{RES}'); self.tk['rr'] = A(f'ds_read_b128 {vr(RES+12,4)}, v{RES+1}')
        for H in range(2):
            A.wait(lg=t[H])
            for i in range(4): A(f'v_cvt_pk_bf16_f32 v{WF+16+4*H+i}, v{WF+8*H+2*i}, v{WF+8*H+2*i+1}')
            self.mfma(AK + 16*H, WF+16+4*H, QF+4*H, None)
        for H in range(2):
            a = AK + 16*H
            A(f'v_fmaak_f32 v{a+8}, v{a+8}, v16, {hx(f2u(1e-6*LOG2E))}')
            A(f'v_rcp_f32 v{a+8}, v{a+8}')
            for i in range(4): A(f'v_pk_mul_f32 {vr(a+2*i,2)}, {vr(a+2*i,2)}, {vr(a+8,2)} op_sel_hi:[1,0]')
            for i in range(4): A(f'v_cvt_pk_bf16_f32 v{AQ+4*H+i}, v{a+2*i}, v{a+2*i+1}')
            t = self.moded([f'buffer_store_dwordx4 {vr(AQ+4*H,4)}, {vL16}, {S_WS}, s89 offen offset:{1024*H}'])
        self.stamp(f'L{L}.ost')
        if L == 0:
            self.res_unpack()
            l = A.lab('cst')
            A(f's_cmp_eq_u32 {sW}, 3'); A(f's_cbranch_scc0 {l}'); A.cond_begin()
            for b in range(3):
                q = XR + 44 + 4*b
                self.pop(self.cs_write(GA+b, q, '', 0)[:-1] + [f'v_mov_b32 v{q+2}, 0', f'v_mov_b32 v{q+3}, 0',
                         f'ds_write_b128 {vMISC}, {vr(q,4)} offset:{CST-MISC+(3+b)*1024}'], 99)
            A.cond_end(); A(f'{l}:')
            if P.get('cvl'): self.bar('BR0', wait=False)
        return t, [f'buffer_store_dwordx2 v[12:13], {vF4}, {S_WS}, {sOFA} offen']

    RING = [XR+64+4*i for i in range(16)] + [WF+4*i for i in range(8)] + [AK+4*i for i in range(8)]
    def op_begin(self, L): self.nr = 0; self.tw = {}
    def op_rd(self, k, upto=64):
        for _ in range(k):
            m = self.nr
            if m >= upto: return
            o = self.wo_off((m >> 2) & 12) - 65536 + 1024*(m & 15)
            self.tw[m] = self.A(f'ds_read_b128 {vr(self.RING[m & 31],4)}, {vTR1} offset:{o}')
            self.nr += 1

    def outproj(self, L, tost, oflags):
        A = self.A; last = (L == 3); P = self.p; tw = self.tw; RING = self.RING
        isB = L % 2
        if last: S = [self.row_tile() + '\ns_mov_b32 s84, s91\ns_add_u32 s85, s91, 8192', self.row_lds(17, 0), self.row_voff(15, 14),
                      f'v_add_u32 v16, {sW11}, {vL16}']
        else: S = [f's_add_u32 {sXO}, {sXO}, {sSLOW}\ns_add_u32 {sST}, {sST}, {sSLOW}\ns_add_u32 {sXW}, {sXW}, {sSLOW}\ns_add_u32 {sSW}, {sSW}, {sSLOW}',
                   f's_add_u32 s91, {sNON}, {L+1}\nv_mov_b32 v{QF+4}, s91\nv_mov_b32 v{QF+5}, s91']
        self.pop(S, 99)
        if not isB: self.op_rd(P.get('ond', 14), 32)
        self.flag(tost, oflags)
        self.probe_(sOFR, 12)
        self.stamp(f'L{L} opub')
        if isB: self.bar('BR', wait=False)
        self.op_rd(P.get('on0', 12), 32)
        self.stamp(f'L{L}.prepoll')
        self.spin(sOFR, 12)
        self.stamp(f'L{L} opoll')
        to = {}
        def ldo(s):
            if s % 4 == 0: A(f's_add_u32 s90, {sOR}, {sCH[s//4]}')
            if s % 4 == 2: A('s_add_u32 s90, s90, 4096')
            to[s] = A(f'buffer_load_dwordx4 {vr(XR+4*s,4)}, {vOL}, {S_WS}, s90 offen offset:{(s%2)*2048} sc1')
        D = P.get('od', 8)
        for s in range(D):
            ldo(s)
            if s >= 1: self.op_rd(3, 32)
        if not isB: self.bar('BR', wait=False)
        if not last: A(f's_add_u32 {sEXP}, {sNON}, {L+1}')
        for s in range(16):
            A.wait(vm=to[s], lg=tw[4*s+3])
            if s in (0, 8, 15): self.stamp(f'L{L}.ops{s}')
            for f in range(4):
                m = 4*s + f
                A(f'v_mfma_f32_16x16x32_bf16 {vr(RES+4*f,4)}, {vr(RING[m & 31],4)}, {vr(XR+4*s,4)}, {vr(RES+4*f,4)}')
                if self.nr <= m + 32 and (s + D >= 16 or f in P.get('rdp', (0, 2))): self.op_rd(1)
                if f == 1 and s + D < 16:
                    ldo(s+D)
                    if L == 0 and s + D == 15: self.bar('BO', wait=False)
        for k in (0, 2, 1, 3, 4, 6, 5, 7): A(f'v_cvt_pk_bf16_f32 v{AQ+k}, v{RES+2*k}, v{RES+2*k+1}')
        for F_ in range(2):
            q = AQ + 4*F_
            for i in range(2): A(f'v_permlane16_swap_b32 v{q+i}, v{q+2+i}')
            if last: A(f'ds_write_b128 v{17+F_}, {vr(q,4)}')
            else: t = self.moded([f'buffer_store_dwordx4 {vr(q,4)}, {vXS}, {S_XB}, {sXW} offen offset:{2048*F_}'])
        if last:
            tt = [A(f'ds_read_b128 {vr(AQ+8+4*i,4)}, v16 offset:{1024*i}') for i in range(2)]
            for i in range(2):
                A.wait(lg=tt[i]); A(f'buffer_store_dwordx4 {vr(AQ+8+4*i,4)}, v15, {S_OUT}, s{84+i} offen')
            self.stamp(f'L{L} out')
            return
        self.stamp(f'L{L}.xst')
        b3e = L > 0 and P.get('b3e', 1)
        if b3e: self.bar('B3', wait=False)
        A(f'v_pk_add_f32 v[12:13], {vr(RES,2)}, {vr(RES+2,2)}'); A(f'v_pk_mul_f32 v[14:15], {vr(RES,2)}, {vr(RES,2)}')
        A(f'v_pk_fma_f32 v[14:15], {vr(RES+2,2)}, {vr(RES+2,2)}, v[14:15]')
        for i in range(2, 8):
            A(f'v_pk_add_f32 v[12:13], v[12:13], {vr(RES+2*i,2)}'); A(f'v_pk_fma_f32 v[14:15], {vr(RES+2*i,2)}, {vr(RES+2*i,2)}, v[14:15]')
        A('v_add_f32 v12, v12, v13'); A('v_add_f32 v14, v14, v15')
        A('v_permlane32_swap_b32 v12, v14'); A('v_add_f32 v12, v12, v14')
        A('v_mov_b32 v13, v12'); A('v_permlane16_swap_b32 v12, v13'); A('v_add_f32 v12, v12, v13')
        A('v_or_b32 v12, 1, v12' if (L + 1) & 1 else 'v_and_b32 v12, -2, v12')
        A(f's_mov_b64 exec, {sSM}')
        self.moded([f'buffer_store_dword v12, {vL16}, {S_WS}, {sSW} offen'])
        A('s_mov_b64 exec, -1')
        if L == 0: self.bar('BX', wait=False)
        self.stamp(f'L{L}.stst')
        tw = {}
        if b3e: self.p1_rd(0, L+1, tw); self.p1_rd(1, L+1, tw)
        self.flag(t, [f'buffer_store_dwordx2 {vr(QF+4,2)}, {vF4}, {S_WS}, {sXFW} offen'])
        self.probe_(sXF, 16)
        self.stamp(f'L{L} xpub')
        if not b3e:
            self.bar('B3', wait=False)
            self.p1_rd(0, L+1, tw); self.p1_rd(1, L+1, tw)
        self.spin(sXF, 16)
        self.stamp(f'L{L} xpoll')
        return tw

    def epiKB(self, L): return self.kv_pack(0) + self.kv_pack(1) + [self.kv_lds(0), self.kv_lds(1)]

    def layerB(self, L):
        A = self.A; P = self.p
        self.stamp(f'L{L} pass1')
        if L == 3: pre = self.pass2_pre(L)
        self.pop(self.KE, 99)
        kp = self.kv_pack(2) + self.kv_pack(3)
        if L == 1:
            self.pop(kp, P.get('q1', 18)); self.bar('BQ1', wait=False); pre = self.pass2_pre(L)
        self.pop(kp, 99); tst = A.tok()
        KW = [self.kv_lds(2), '', self.kv_lds(3)]
        self.stamp(f'L{L} kvpub')
        F = [f'v_add_u32 v14, {MISC}, v17\nv_add_u32 v15, {MISC}, v18', f'v_mul_f32 {vRSTD}, {hx(f2u(0.25*LOG2E))}, {vRSTD}', '', '']
        F += [f'ds_read_b128 {vr(AK+4*i,4)}, {vTR1} offset:{WO-65536+1024*i}' for i in range(8)]
        F += [f'v_add_u32 v16, {sINV[0]}, v17\nv_add_u32 v12, {sINV[0]}, v18', f's_add_u32 {sOR}, {sOR}, {sSLOW}']
        def flag():
            A.wait(vm=tst)
            A(f'buffer_store_dword v{QF+4}, {vF4}, {S_PL}, {sKF} offen sc1')
        at = {12: [lambda: self.bar('B1a', wait=False)]}
        k0 = 14
        for t in range(4):
            r = self.treg(t)
            at[k0+3*t] = [f'ds_read_b128 {vr(r,4)}, v14 offset:{REC*t}']
            at[k0+1+3*t] = [f'ds_read_b128 {vr(r+4,4)}, v15 offset:{REC*t+2048}']
            at[k0+2+3*t] = [f'ds_read_b128 {vr(r+8,4)}, v15 offset:{REC*t+3200}']
        at.setdefault(P.get('fl', 21), []).append(flag)
        self.pass2(L, F, pre, at=at, before=KW)
        self.stamp(f'L{L}.p2end')
        lw = [A.lab(f'att{w}') for w in range(4)]; lj = A.lab('attj')
        for w in (1, 2, 0): A(f's_cmp_eq_u32 {sW}, {w}'); A(f's_cbranch_scc1 {lw[w]}')
        for P_ in range(2):
            lb_ = A.lab('attb')
            A(f'{lw[3-P_]}:')
            A.cond_begin(); self.attn(L, P_, 1, lb_); A.cond_end()
            A(f'{lw[P_]}:')
            A.cond_begin(); self.attn(L, P_, 0, lb_); A.cond_end()
            if not P_: A(f's_branch {lj}')
        A(f'{lj}:')
        early = P.get('early', 1) if L == 3 else P.get('early1', 0)
        if early:
            lf, lr = A.lab('fbb'), A.lab('fbbr')
            A('s_cmp_lg_u32 s86, 0'); A(f's_cbranch_scc1 {lf}'); A(f'{lr}:')
            A.tail += [f'{lf}:'] + self.fb_call(1) + self.fin_ops(1)
            l1_, l2_ = A.lab('fbs'), A.lab('fbt')
            st, fl = self.o_store(1), f'buffer_store_dword v13, {vF4}, {S_WS}, s11 offen'
            A.tail += [f's_cmp_lg_u32 {sMODE}, 0', f's_cbranch_scc1 {l1_}', st, 's_waitcnt vmcnt(0)', 's_mov_b64 exec, 1', fl, f's_branch {l2_}',
                       f'{l1_}:', st + ' sc1', 's_waitcnt vmcnt(0)', 's_mov_b64 exec, 1', fl + ' sc1', f'{l2_}:', 's_mov_b64 exec, -1', f's_branch {lr}']
        for X in ((0,) if early else (1, 0)):
            lf, lr = A.lab('fb'), A.lab('fbr')
            self.pop(self.chk_ops(X), 9)
            A(f's_branch {lf}' if self.force_fb else f's_cbranch_vccnz {lf}')
            A(f'{lr}:')
            A.tail += [f'{lf}:'] + self.fb_call(X) + [f's_branch {lr}']
            self.pop(self.fin_ops(X), 99)
            t = self.moded([self.o_store(X)])
        self.stamp(f'L{L}.ost')
        self.op_begin(L)
        return t, [f'buffer_store_dword v13, {vF4}, {S_WS}, s{10+X} offen' for X in range(1 if early else 2)]

    def attn(self, L, P, H, lbody):
        A = self.A; treg = self.treg; w = 3 - P if H else P; again = P or not H; rec = not P and not H
        if P == 0:
            steps = [(0,0,'D'),(1,0,''),(1,1,''),(1,2,''),(1,3,'D')]
            far = [(1,-5,'F'),(0,-5,''),(0,-6,''),(0,-7,''),(0,-8,'F')]
        else:
            steps = [(0,0,''),(1,0,''),(0,1,'D'),(1,1,''),(1,2,'D')]
            far = [(1,-5,''),(1,-6,'F'),(0,-5,''),(0,-6,''),(0,-7,'F')]
        early = self.p.get('early', 1) if L == 3 else self.p.get('early1', 0)
        for t in range(1, 5): steps += [(0,-t,''),(1,-t,'')]
        steps += far
        if H: steps[0], steps[1] = steps[1], steps[0]
        nlast = max(n for n, st in enumerate(steps) if st[0] == 1)
        nfar = 4 if P == 0 else 3
        S = [XR+96, XR+112]; PP = AQ; O = [WF, WF+16]; MD, MF = AK, AV
        tk = {}; tv = {}
        for hh in (1-H, H):
            for i in range(4*hh, 4*hh+4): A(f'v_pk_mul_f32 {vr(AQ+2*i,2)}, {vr(AQ+2*i,2)}, v[8:9] op_sel_hi:[1,0]')
            for i in range(4*hh, 4*hh+4): A(f'v_cvt_pk_bf16_f32 v{QF+i}, v{AQ+2*i}, v{AQ+2*i+1}')
            if hh != H: A(f'ds_write_b128 {vMISC}, {vr(QF+4*hh,4)} offset:{QL-MISC+1024*w}')
        A.wait(lg='all')
        tq = {H: None}
        def ldg(t):
            r = treg(t); so = f's{11-t}'
            def f0(): tk[t] = A(f'buffer_load_dwordx4 {vr(r,4)}, v16, {S_PL}, {so} offen sc1')
            def f1(): A(f'buffer_load_dwordx4 {vr(r+4,4)}, v12, {S_PL}, {so} offen offset:2048 sc1')
            def f2(): tv[t] = A(f'buffer_load_dwordx4 {vr(r+8,4)}, v12, {S_PL}, {so} offen offset:3200 sc1')
            return [f0, f1, f2]
        pr = self.hprobe()
        def qk(n):
            X, t, m = steps[n]
            if t < 0: assert t in tk
            A.wait(vm=tk.get(t), lg=tq[X])
            self.mfma(S[n & 1], treg(t), QF + 4*X, {'': None, 'D': MD, 'F': MF}[m])
        seen = set()
        def pv(n, u):
            X, t, m = steps[n]
            if t < 0: assert t in tv
            A.wait(vm=tv.get(t))
            c = O[X] if X in seen else None
            seen.add(X)
            self.mfma(O[X], treg(t) + 4 + 4*u, PP + 4*u, c)
        qk(0)
        self.bar('B1', wait=False, rec=rec)
        tq[1-H] = A(f'ds_read_b128 {vr(QF+4*(1-H),4)}, {vMISC} offset:{QL-MISC+1024*(3-w)}')
        self.stamp(f'L{L} pass2', again)
        for l in pr: tp = A(l)
        F = []; G = []
        for n in range(18):
            s = S[n & 1]
            if n in self.p.get('attst', (2, 4, 5, 13)): self.stamp(f'L{L} att{n}', again if n <= 2 else P)
            if n == 2:
                A.wait(vm=tp)
                self.retry([f'v_cmp_ne_u32 vcc, {sNON}, v13'], pr, valid=sVAL, inline=True)
                for t in range(1, 5): F += ldg(-t)
            if n == 6:
                fl = []
                for t in range(5, 5 + nfar): fl += ldg(-t)
                def f00(f=fl[0]): A(f'v_add_u32 v16, {sINV[1]}, v17\nv_add_u32 v12, {sINV[1]}, v18'); f()
                F += [f00] + fl[1:]
            if n == self.p.get('hg', 7): self.bar('HG', wait=False, rec=rec)
            if n == 3: G += [f's_add_u32 {sEXP}, {sNON}, {8+L}\nv_mov_b32 v13, {sEXP}']
            for i in range(16):
                A(f'v_exp_f32 v{s+i}, v{s+i}')
                if early and n == nlast + 1 and i == 12:
                    self.pop(self.chk_ops(1) + self.fin_ops(1), 99)
                    A('s_or_b32 s86, vcc_lo, vcc_hi')
                    if self.force_fb: A('s_mov_b32 s86, 1')
                    tb_ = self.moded([self.o_store(1)])
                if early and n == min(nlast + 3, 17) and i == 9:
                    l = A.lab('nof')
                    A('s_cmp_lg_u32 s86, 0'); A(f's_cbranch_scc1 {l}')
                    A.cond_begin(); self.flag(tb_, [f'buffer_store_dword v13, {vF4}, {S_WS}, s11 offen']); A.cond_end()
                    A(f'{l}:')
                if i == 0 and n > 0: A(f'v_cvt_pk_bf16_f32 v{PP+7}, v{S[1-(n&1)]+14}, v{S[1-(n&1)]+15}')
                if i == (5 if n else 7) and n + 1 < 18: qk(n+1)
                if i >= 2 and i % 2 == 0: A(f'v_cvt_pk_bf16_f32 v{PP+(i-2)//2}, v{s+i-2}, v{s+i-1}')
                if i == 2 and n > 0: pv(n-1, 1)
                if i == 2 and n == 2:
                    if H: A(f's_branch {lbody}'); return
                    A(f'{lbody}:')
                if i == 11: pv(n, 0)
                if i in self.p.get('fslots', (3, 8, 13)): self.pop(F, 1)
                if i == 15: self.pop(G, 1)
        A(f'v_cvt_pk_bf16_f32 v{PP+7}, v{s+14}, v{s+15}')
        pv(17, 1)
        self.stamp(f'L{L} att18', P)
        assert not F and not G

    def build(self):
        A = self.M
        hdr = open('interleave_layers__linear_attn_block__sliding_block__prompt.s.ref').read().split('\n')
        for l in hdr:
            if l.startswith(';') and '@launch' not in l: A.L.append(l)
        A(f'; @launch grid=(256,1,1) block=(512,1,1) lds={LDS_BYTES}')
        A('.amdgcn_target "amdgcn-amd-amdhsa--gfx950"'); A('.text'); A(f'.globl {KN}'); A('.p2align 8'); A(f'.type {KN},@function'); A(f'{KN}:')
        self.head()
        self.helper()
        A.L += self.H.L
        self.prologue()
        for L in range(4):
            if L > 0: self.pass1(L, nx)
            r = self.layerA(L) if L % 2 == 0 else self.layerB(L)
            nx = self.outproj(L, *r)
        assert self.bars[id(self.M)] == self.bars[id(self.H)], (self.bars[id(self.M)], self.bars[id(self.H)])
        if self.probe:
            A.wait(vm='all')
            if self.probe == 'none': A('s_mov_b32 s79, 0')
            else: self.stamp('end')
            A('s_lshl_b32 s79, s79, 2'); A('s_add_u32 s79, s79, 10000')
            A('L_probe:'); A('s_memrealtime s[100:101]'); A('s_waitcnt lgkmcnt(0)'); A('s_sub_u32 s100, s100, s99'); A('s_cmp_lt_u32 s100, s79'); A('s_cbranch_scc1 L_probe')
        if self.debug:
            A.wait(vm='all'); self.stamp('end'); A('s_waitcnt lgkmcnt(0)'); self.stamp('end2')
            A(f's_lshl_b32 s91, {sTB}, 4'); A(f's_add_u32 s91, s91, {sJ}'); A('s_lshl_b32 s91, s91, 8'); A(f's_add_u32 s91, s91, {hx(STAMP)}')
            A(f'v_writelane_b32 {vDBG}, {sSPIN}, 62'); A(f'v_writelane_b32 {vDBG}, {sMODE}, 63')
            A(f'v_lshlrev_b32 v12, 2, {vLANE}'); A(f'buffer_store_dword {vDBG}, v12, {S_WS}, s91 offen')
        A('L_tailpad:')
        A('L_end:')
        A('s_endpgm')
        A.L += A.tail + self.fallback()
        A('L_codeend:')
        A('.fill 6144, 4, 0xbf810000')
        A('.section .rodata,"a"'); A('.p2align 6'); A(f'.amdhsa_kernel {KN}')
        for d in ['next_free_vgpr 256', 'next_free_sgpr 102', 'accum_offset 256', 'group_segment_fixed_size 0', 'kernarg_size 72',
                  'user_sgpr_count 2', 'user_sgpr_kernarg_segment_ptr 1', 'system_sgpr_workgroup_id_x 1']:
            A('.amdhsa_' + d)
        A('.end_amdhsa_kernel')
        t = A.text()
        t, self.npads = insert_pads(t, 'L_wback', 'L_tailpad', 'L_wback', 4, 4096)
        return t.replace('L_wback ; ', '')

if __name__ == '__main__':
    import argparse
    ap = argparse.ArgumentParser()
    ap.add_argument('-o', default='interleave_layers__linear_attn_block__sliding_block__prompt.s')
    ap.add_argument('--debug', action='store_true')
    a = ap.parse_args()
    g = Gen(4, a.debug)
    t = g.build()
    open(a.o, 'w').write(t)
    print('lines', t.count('\n'), 'nops inserted', g.M.nops, 'pads', g.npads, 'barriers', len(g.bars[id(g.M)]))
```
